```python
import torch

def _softmax(x, axis=-1):
    return torch.softmax(x, dim=axis)

def _gelu(x):
    return torch.nn.functional.gelu(x, approximate='tanh')

def _silu(x):
    return torch.nn.functional.silu(x)

def _sigmoid(x):
    return torch.sigmoid(x)

def _layernorm(x, axis=-1, eps=1e-05):
    m = x.mean(dim=axis, keepdim=True)
    v = x.var(dim=axis, keepdim=True, unbiased=False)
    return (x - m) / torch.sqrt(v + eps)

def _scatter_add(tgt, idx, src, axis=0):
    return tgt.clone().index_add_(axis, idx, src)

def _segment_sum(src, seg, n):
    out = torch.zeros((n,) + src.shape[1:], dtype=src.dtype)
    return out.index_add_(0, seg, src)

def _pad(x, pw):
    flat = tuple((v for pair in reversed(pw) for v in pair))
    return torch.nn.functional.pad(x, flat)
kernel_name = 'gated_mix__memory_aug_recurrent_mem_tr__ssm_conv_s5__prompt'

def setup_inputs():

    _w = lambda a: (lambda t: t.to(torch.bfloat16) if t.is_floating_point() else t)(torch.as_tensor(a))

    def _A_setup():
        B, S, Dm = (1, 2048, 640)
        H, Dh = (32, 192)
        M, seg = (8, 32)
        seg = min(seg, S)
        S = S // seg * seg
        return {'x': _w((lambda *s: torch.randn(*s, dtype=torch.bfloat16) * 0.05)(B, S, Dm)), 'mem0': _w((lambda *s: torch.randn(*s, dtype=torch.bfloat16) * 0.8)(B, M, Dm)), 'Wq': _w((lambda *s: torch.randn(*s, dtype=torch.bfloat16) * 1.6)(Dm, H, Dh) * Dm ** (-0.5)), 'Wk': _w((lambda *s: torch.randn(*s, dtype=torch.bfloat16) * 1.6)(Dm, H, Dh) * Dm ** (-0.5)), 'Wv': _w((lambda *s: torch.randn(*s, dtype=torch.bfloat16) * 0.8)(Dm, H, Dh) * Dm ** (-0.5)), 'Wo': _w((lambda *s: torch.randn(*s, dtype=torch.bfloat16) * 0.8)(H, Dh, Dm) * (H * Dh) ** (-0.5)), 'seg_len': seg}
    _A_in = _A_setup()

    def _B_setup():
        B, S, D = (1, 2048, 640)
        P = D
        Lambda_re = -0.5 * (lambda _x: torch.exp(torch.as_tensor(_x)))((lambda *s: torch.randn(*s, dtype=torch.bfloat16) * 0.8)(P))
        Lambda_im = (lambda *s: torch.randn(*s, dtype=torch.bfloat16) * 0.8)(P) * 1.0
        B_re = (lambda *s: torch.randn(*s, dtype=torch.bfloat16) * 0.8)(P, D) * D ** (-0.5)
        B_im = (lambda *s: torch.randn(*s, dtype=torch.bfloat16) * 0.8)(P, D) * D ** (-0.5)
        C_re = (lambda *s: torch.randn(*s, dtype=torch.bfloat16) * 0.8)(D, P) * P ** (-0.5)
        C_im = (lambda *s: torch.randn(*s, dtype=torch.bfloat16) * 0.8)(D, P) * P ** (-0.5)
        log_dt = (lambda *s: torch.randn(*s, dtype=torch.bfloat16) * 0.8)(P) * 0.3 - 2.0
        Dskip = (lambda *s: torch.randn(*s, dtype=torch.bfloat16) * 0.8)(D)
        return {'x': _w((lambda *s: torch.randn(*s, dtype=torch.bfloat16) * 0.05)(B, S, D)), 'Lambda_re': _w(Lambda_re), 'Lambda_im': _w(Lambda_im), 'B_re': _w(B_re), 'B_im': _w(B_im), 'C_re': _w(C_re), 'C_im': _w(C_im), 'log_dt': _w(log_dt), 'Dskip': _w(Dskip)}
    _B_in = _B_setup()
    return {'A_x': _A_in['x'], 'A_mem0': _A_in['mem0'], 'A_Wq': _A_in['Wq'], 'A_Wk': _A_in['Wk'], 'A_Wv': _A_in['Wv'], 'A_Wo': _A_in['Wo'], 'A_seg_len': _A_in['seg_len'], 'B_x': _B_in['x'], 'B_Lambda_re': _B_in['Lambda_re'], 'B_Lambda_im': _B_in['Lambda_im'], 'B_B_re': _B_in['B_re'], 'B_B_im': _B_in['B_im'], 'B_C_re': _B_in['C_re'], 'B_C_im': _B_in['C_im'], 'B_log_dt': _B_in['log_dt'], 'B_Dskip': _B_in['Dskip'], 'gate_w': _w((lambda *s: torch.randn(*s, dtype=torch.bfloat16) * 0.05)(640) * 16.0)}

def reference(A_x, A_mem0, A_Wq, A_Wk, A_Wv, A_Wo, A_seg_len, B_x, B_Lambda_re, B_Lambda_im, B_B_re, B_B_im, B_C_re, B_C_im, B_log_dt, B_Dskip, gate_w):

    def _A_ref(x, mem0, Wq, Wk, Wv, Wo, seg_len):
        B, S, Dm = x.shape
        H, Dh = (Wq.shape[1], Wq.shape[2])
        M = mem0.shape[1]
        scale = Dh ** (-0.5)
        n_seg = S // seg_len
        L = M + seg_len
        idx = torch.arange(L)
        mask = (idx[:, None] < M) | (idx[:, None] >= idx[None, :])
        mem = mem0
        outs = []
        for s in range(n_seg):
            xs = x[:, s * seg_len:(s + 1) * seg_len, :].clone()
            h = torch.concatenate([mem, xs], axis=1)
            q = torch.einsum('btd,dhe->bhte', h, Wq)
            k = torch.einsum('btd,dhe->bhte', h, Wk)
            v = torch.einsum('btd,dhe->bhte', h, Wv)
            scores = torch.einsum('bhqe,bhke->bhqk', q, k) * scale
            scores = torch.where(mask[None, None], scores, -1000000000.0)
            p = _softmax(scores, axis=-1)
            o = torch.einsum('bhqk,bhke->bhqe', p, v)
            o = torch.einsum('bhte,hed->btd', o, Wo)
            mem = o[:, :M, :].clone()
            outs.append(o[:, M:, :])
        return torch.concatenate(outs, axis=1)

    def _B_ref(x, Lambda_re, Lambda_im, B_re, B_im, C_re, C_im, log_dt, Dskip):
        Bsz, L, H = x.shape
        Lam = Lambda_re + 1j * Lambda_im
        Bmat = B_re + 1j * B_im
        Cmat = C_re + 1j * C_im
        dt = torch.exp(log_dt)
        Lam_bar = torch.exp(dt * Lam)
        B_bar = ((Lam_bar - 1.0) / Lam)[:, None] * Bmat
        Bu = torch.einsum('bld,pd->blp', x + 0j, B_bar)
        h = torch.zeros_like(Bu[:, 0, :])
        hs = []
        for t in range(L):
            h = Lam_bar[None, :] * h + Bu[:, t, :]
            hs.append(h)
        hseq = torch.stack(hs, 1)
        y = 2.0 * torch.einsum('blp,dp->bld', hseq, Cmat).real + x * Dskip[None, None, :]
        return y
    x = A_x
    g = _sigmoid((x * gate_w).sum(-1, keepdims=True))
    a = _A_ref(x, A_mem0, A_Wq, A_Wk, A_Wv, A_Wo, A_seg_len)
    b = _B_ref(x, B_Lambda_re, B_Lambda_im, B_B_re, B_B_im, B_C_re, B_C_im, B_log_dt, B_Dskip)
    return g * a + (1 - g) * b
```

```python
from common import *
import math
S_PAR, S_STEP, S_BASE, S_B2 = 60, 61, 62, 63
CSC = (192 ** -0.5) * math.log2(math.e)
import struct
def f32(x): return '0x%08x' % struct.unpack('<I', struct.pack('<f', x))[0]
NL = 14
WL_SZ = NL * 2048
L_MEM = 4 * WL_SZ; L_KX = L_MEM + 10240; L_QI = L_KX + 24576; L_KI = L_QI + 6144
assert L_KI + 6144 <= 163840
WORK = 256 - (60 - 32 - NL) * 8

def step_base(a, dst, sstep, add=0):
    if add: a(f's_add_u32 s36, s{sstep}, {add}'); sstep = 36
    a(f'''
    s_lshr_b32 s37, s{sstep}, 1
    s_xor_b32 s37, s37, s{S_PAR}
    s_and_b32 s37, s37, 1
    s_lshl_b32 s37, s37, 13
    s_lshl_b32 s{dst}, s{sstep}, 20
    s_add_u32 s{dst}, s{dst}, s37
    ''')
def get_parity(a):
    a(f's_mov_b32 s{S_PAR}, {int(a.opt.get("par", 0))}')

def maxtree(a, dst, regs):
    regs = list(regs); acc = [None, None]; k = 0
    while regs:
        d = dst + k
        if acc[k] is None:
            t = regs[:3]; regs = regs[3:]
            if len(t) == 3: a(f'v_max3_u32 v{d}, v{t[0]}, v{t[1]}, v{t[2]}')
            elif len(t) == 2: a(f'v_max_u32 v{d}, v{t[0]}, v{t[1]}')
            else: a(f'v_mov_b32 v{d}, v{t[0]}')
            acc[k] = d
        else:
            t = regs[:2]; regs = regs[2:]
            if len(t) == 2: a(f'v_max3_u32 v{d}, v{d}, v{t[0]}, v{t[1]}')
            else: a(f'v_max_u32 v{d}, v{d}, v{t[0]}')
        k ^= 1
    if acc[1] is not None: a(f'v_max_u32 v{dst}, v{dst}, v{dst+1}')

def poll(a, loads, regs, vt, stem):
    l = a.lab(stem)
    a('s_mov_b32 s31, 0')
    a.vm = []
    a.label(l)
    for x in loads: a(x)
    a(f's_add_u32 s31, s31, 1'); a(f's_cmp_gt_u32 s31, {SPIN_MAX}')
    a.branch('s_cbranch_scc1 L_abort', nofence=True)
    maxtree(a, vt, regs)
    a(f'v_cmp_eq_u32 vcc, -1, v{vt}')
    assert not a.vm
    a.branch(f's_cbranch_vccnz {l}', nofence=True)

def allred(op, x, t):
    return [f'v_mov_b32 v{t}, v{x}', f'v_permlane32_swap_b32 v{x}, v{t}', f'{op} v{x}, v{x}, v{t}',
            f'v_mov_b32 v{t}, v{x}', f'v_permlane16_swap_b32 v{x}, v{t}', f'{op} v{x}, v{x}, v{t}']

class Units:
    def __init__(s, order, in_lds, stg, vwl):
        s.loc = {}; s.ldsn = {}; nreg = 0
        for pos, u in enumerate(order):
            if pos in in_lds: s.ldsn[u] = len(s.ldsn)
            else:
                s.loc[u] = 256 + 8 * nreg if nreg < 32 else WORK + 8 * (nreg - 32); nreg += 1
        assert len(s.ldsn) == NL and nreg == 60 - NL
        s.stg, s.vwl = stg, vwl
    def reg(s, u): return s.loc[u] if u in s.loc else s.stg + 8 * (s.ldsn[u] % 3)
    def fetch(s, n):
        if n >= NL: return []
        b = s.stg + 8 * (n % 3)
        return [f'ds_read_b128 {vr(b + 4*i, 4)}, v{s.vwl} offset:{n*2048 + i*1024}' for i in range(2)]
    def after(s, u): return s.fetch(s.ldsn[u] + 3) if u in s.ldsn else []
    def hold(s, base):
        return lambda u: s.loc[u] if u in s.loc else base + 8 * s.ldsn[u]
    def park(s, a, base):
        for n in range(NL):
            for i in range(2): a(f'ds_write_b128 v{s.vwl}, {vr(base + 8*n + 4*i, 4)} offset:{n*2048 + i*1024}')
        a.waitf(lg=0)

def h_setup(a, VG, VWL, VRD, IDX):
    l = a.lab('hs')
    a(f'''
    v_lshlrev_b32 v{VG}, 4, v{V_TID}
    v_add_u32 v{VG+1}, 4096, v{VG}
    v_add_u32 v{VG+2}, 16384, v{VG}
    v_add_u32 v{VG+3}, {L_MEM}, v{VG}
    v_add_u32 v{VG+4}, {L_MEM + 8192}, v{VG}
    s_cmp_lt_u32 s{S_WAVE}, 2
    s_cbranch_scc1 {l}
    v_mov_b32 v{VG+2}, v{VG}
    v_mov_b32 v{VG+4}, v{VG+3}
    ''')
    a.label(l)
    a(f'''
    s_mul_i32 s30, s{S_WAVE}, {WL_SZ}
    v_lshl_add_u32 v{VWL}, v{V_LANE}, 4, s30
    v_lshlrev_b32 v{VRD}, 4, v{V_LANE}
    v_add_u32 v{VRD}, {L_MEM}, v{VRD}
    v_and_b32 v{IDX}, 8, v{V_LANE}
    v_cmp_eq_u32 vcc, 0, v{IDX}
    v_mov_b32 v{IDX}, 0xeeee
    v_mov_b32 v{IDX+1}, 0x4444
    v_cndmask_b32 v{IDX}, v{IDX}, v{IDX+1}, vcc
    ''')
def gather_mem(a, VG, VRD, AF, vt):
    ld = [f'buffer_load_dwordx4 {vr(AF + 4*i, 4)}, v{VG+i}, s[{WS}:{WS+3}], s{S_BASE} offen sc1' for i in range(3)]
    poll(a, ld, range(AF, AF + 12), vt, 'gm')
    a(f'ds_write_b128 v{VG+3}, {vr(AF, 4)}')
    a(f'ds_write_b128 v{VG+3}, {vr(AF+4, 4)} offset:4096')
    a(f'ds_write_b128 v{VG+4}, {vr(AF+8, 4)}')
    a.waitf(lg=0)
    a('s_barrier')
    for t in range(10): a(f'ds_read_b128 {vr(AF + 4*t, 4)}, v{VRD} offset:{t*1024}')
def sm(acc, A, B, IDX): return f'v_smfmac_f32_16x16x64_bf16 {vr(acc,4)}, {vr(A,4)}, {ur(B,8)}, v{IDX}'
def flag_addr(a, v):
    a(f'''
    s_lshl_b32 s30, s{S_ROLE}, 7
    s_lshl_b32 s31, s{S_WAVE}, 2
    s_add_u32 s30, s30, s31
    s_add_u32 s30, s30, {FL_BASE}
    v_mov_b32 v{v}, s30
    ''')
def flag_store(a, vaddr, vt, sval):
    a(f'v_mov_b32 v{vt}, {sval}'); a('s_mov_b64 exec, 1')
    a(f'buffer_store_dword v{vt}, v{vaddr}, s[{WS}:{WS+3}], 0 offen sc1'); a('s_mov_b64 exec, -1')
def need_flag4(a, sseen, sneed, sline, vt, vz):
    ok = a.lab('fok'); lp = a.lab('fpl')
    a(f's_cmp_gt_u32 s{sseen}, s{sneed}'); a(f's_cbranch_scc1 {ok}')
    a('s_mov_b32 s31, 0')
    a.label(lp)
    a(f'''
    buffer_load_dwordx4 {vr(vt,4)}, v{vz}, s[{WS}:{WS+3}], s{sline} offen sc1
    s_add_u32 s31, s31, 1
    s_cmp_gt_u32 s31, {SPIN_MAX}
    s_cbranch_scc1 L_abort
    v_min_u32 v{vt}, v{vt}, v{vt+1}
    v_min3_u32 v{vt}, v{vt}, v{vt+2}, v{vt+3}
    v_readfirstlane_b32 s{sseen}, v{vt}
    s_cmp_le_u32 s{sseen}, s{sneed}
    s_cbranch_scc1 {lp}
    ''')
    a.label(ok)


def smark(a, i):
    if not a.opt.get('ts'): return
    a('s_memrealtime s[98:99]'); a.waitf(lg=0); a(f's_mov_b32 s{88+i}, s98')
def smark_out(a, vreg, n):
    if not a.opt.get('ts'): return
    for i in range(n): a(f'v_writelane_b32 v{vreg}, s{88+i}, {i}')

def role_b(a):
    a.c('===== B: v = mem Wv[h], Z = v Wo[h] =====')
    a(f's_sub_u32 s{S_H}, s{S_ROLE}, {R_B}')
    srd(a, SA, 'Wv', 640 * 12288); srd(a, SB, 'Wo', 32 * 245760)
    a.waitf(lg=0)
    smark(a, 0)
    get_parity(a)
    VG, VWL, VRD, IDX, VZ4, VZ2, VIW, VIW3, VIR, VFL, T = 2, 7, 8, 9, 11, 13, 14, 15, 16, 17, 18
    ONES, AF, AV, STG, TS, AZ = 20, 24, 64, 76, 100, 104
    VA, PK = 24, 36
    assert AZ + 40 <= WORK
    def zaddr():
        a(f"""
        s_mul_i32 s30, s{S_WAVE}, 10
        s_add_u32 s30, s30, 8
        s_lshl_b32 s30, s30, 14
        s_lshl_b32 s31, s{S_H}, 8
        s_add_u32 s30, s30, s31
        v_and_b32 v{T}, 15, v{V_LANE}
        v_lshl_add_u32 v{T}, v{T}, 4, s30
        v_lshrrev_b32 v{T+1}, 4, v{V_LANE}
        v_lshl_add_u32 v{VZ4}, v{T+1}, 14, v{T}
        v_add_u32 v{VZ4+1}, {4*16384}, v{VZ4}
        v_lshrrev_b32 v{T+1}, 5, v{V_LANE}
        v_lshl_add_u32 v{VZ2}, v{T+1}, 14, v{T}
        v_bfe_u32 v{T+1}, v{V_LANE}, 4, 1
        v_lshl_add_u32 v{VZ2}, v{T+1}, 3, v{VZ2}
        v_add_u32 v{VZ2}, {8*16384}, v{VZ2}
        """)
        for i in range(4): a(f'v_mov_b32 v{ONES+i}, -1')
    def clear(sreg):
        a(f'buffer_store_dwordx4 {vr(ONES,4)}, v{VZ4}, s[{WS}:{WS+3}], s{sreg} offen sc1')
        a(f'buffer_store_dwordx4 {vr(ONES,4)}, v{VZ4+1}, s[{WS}:{WS+3}], s{sreg} offen sc1')
        a(f'buffer_store_dwordx2 {vr(ONES,2)}, v{VZ2}, s[{WS}:{WS+3}], s{sreg} offen sc1')
    zaddr()
    a(f's_mov_b32 s{S_STEP}, 0')
    step_base(a, S_BASE, S_STEP); clear(S_BASE)
    step_base(a, S_B2, S_STEP, 1); clear(S_B2)
    arrive(a, T)
    order = [('v', j, t) for t in range(10) for j in (0, 1)] + [('v', 2, t) for t in range(10)]
    order += [('o', j, u) for j in range(10) for u in range(3)]
    U = Units(order, {3, 8, 13, 18, 22, 26, 30, 34, 38, 42, 46, 50, 54, 58}, STG, VWL)
    HB = WORK - 8 * NL; hold = U.hold(HB)
    a(f's_mul_i32 s41, s{S_H}, 384'); a(f's_mul_i32 s42, s{S_H}, 245760')
    load_weights(a, [WMat(SA, 12288, 24, 20, 4, True, etile_sreg, lambda j, ks: hold(('v', j, ks >> 1)) + 4 * (ks & 1), 3),
                     WMat(SB, 1280, 80, 6, 1, False, dtile_sreg, lambda j, ks: hold(('o', j, ks >> 1)) + 4 * (ks & 1), 10)], 2, sbase=[41, 42])
    h_setup(a, VG, VWL, VRD, IDX)
    U.park(a, HB)
    zaddr()
    a(f"""
    v_and_b32 v{T}, 15, v{V_LANE}
    v_lshlrev_b32 v{T}, 4, v{T}
    v_bfe_u32 v{T+1}, v{V_LANE}, 4, 1
    v_lshl_add_u32 v{T}, v{T+1}, 3, v{T}
    v_lshrrev_b32 v{T+1}, 5, v{V_LANE}
    s_lshl_b32 s30, s{S_WAVE}, 9
    s_add_u32 s30, s30, {L_QI}
    v_lshl_add_u32 v{VIW}, v{T+1}, 8, v{T}
    v_add_u32 v{VIW}, s30, v{VIW}
    s_lshl_b32 s30, s{S_WAVE}, 8
    s_add_u32 s30, s30, {L_QI + 8*256}
    v_lshl_add_u32 v{VIW3}, v{T+1}, 2, v{T}
    v_add_u32 v{VIW3}, s30, v{VIW3}
    """)
    a(f"""
    v_lshrrev_b32 v{VIR}, 5, v{V_LANE}
    v_lshlrev_b32 v{VIR}, 9, v{VIR}
    v_bfe_u32 v{T}, v{V_LANE}, 3, 1
    v_lshl_add_u32 v{VIR}, v{T}, 8, v{VIR}
    v_bfe_u32 v{T}, v{V_LANE}, 4, 1
    v_lshl_add_u32 v{VIR}, v{T}, 7, v{VIR}
    v_bfe_u32 v{T}, v{V_LANE}, 1, 1
    v_lshl_add_u32 v{VIR}, v{T}, 5, v{VIR}
    v_bfe_u32 v{T}, v{V_LANE}, 2, 1
    v_lshl_add_u32 v{VIR}, v{T}, 4, v{VIR}
    v_and_b32 v{T}, 1, v{V_LANE}
    v_lshl_add_u32 v{VIR}, v{T}, 3, v{VIR}
    v_add_u32 v{VIR}, {L_QI}, v{VIR}
    """)
    flag_addr(a, VFL)
    smark(a, 1)
    wait_all_arrived(a, T)
    smark(a, 2)
    stamp_init(a, TS, 4); smark_out(a, TS + 3, 3)
    a.label('L_b_loop')
    for i in range(12): a(f'v_mov_b32 v{AV+i}, 0')
    for i in range(40): a(f'v_mov_b32 v{AZ+i}, 0')
    for n in range(3): [a(x) for x in U.fetch(n)]
    gather_mem(a, VG, VRD, AF, T)
    stamp(a, TS, f's{S_STEP}')
    def fold(x, y): return [f'v_permlane32_swap_b32 v{x}, v{y}', f'v_add_f32 v{x}, v{x}, v{y}']
    main = []; side = {}
    def put(g, l): side.setdefault(g, []).extend(l)
    for pos, u in enumerate(order[:30]):
        main.append([sm(AV + 4*u[1], AF + 4*u[2], U.reg(u), IDX)] + U.after(u))
    for r in range(4): put(22 + r, fold(AV + r, AV + 4 + r))
    put(26, [f'v_cvt_pk_bf16_f32 v{AV}, v{AV}, v{AV+1}', f'v_cvt_pk_bf16_f32 v{AV+1}, v{AV+2}, v{AV+3}'])
    put(27, [f'ds_write_b64 v{VIW}, {vr(AV,2)}'])
    interleave(a, main, side)
    a(f'v_permlane32_swap_b32 v{AV+8}, v{AV+10}'); a(f'v_permlane32_swap_b32 v{AV+9}, v{AV+11}')
    a(f'v_add_f32 v{AV+8}, v{AV+8}, v{AV+10}'); a(f'v_add_f32 v{AV+9}, v{AV+9}, v{AV+11}')
    a(f'v_cvt_pk_bf16_f32 v{AV+8}, v{AV+8}, v{AV+9}')
    a(f'ds_write_b32 v{VIW3}, v{AV+8}')
    a.waitf(lg=0)
    a('s_barrier')
    for u in range(3):
        for i in range(2): a(f'ds_read_b64_tr_b16 {vr(VA + 4*u + 2*i, 2)}, v{VIR} offset:{u*1024 + i*64}')
    main = []; side = {}
    for pos, u in enumerate(order[30:]):
        main.append([sm(AZ + 4*u[1], VA + 4*u[2], U.reg(u), IDX)] + U.after(u))
    def grp4(t0, p, vaddr):
        A, C, B, D = (AZ + 4*(t0 + k) for k in range(4))
        l = []
        for r in range(4): l += fold(A + r, B + r)
        l += [f'v_cvt_pk_bf16_f32 v{p}, v{A}, v{A+1}', f'v_cvt_pk_bf16_f32 v{p+2}, v{A+2}, v{A+3}']
        for r in range(4): l += fold(C + r, D + r)
        l += [f'v_cvt_pk_bf16_f32 v{p+1}, v{C}, v{C+1}', f'v_cvt_pk_bf16_f32 v{p+3}, v{C+2}, v{C+3}']
        l += [f'v_permlane16_swap_b32 v{p}, v{p+1}', f'v_permlane16_swap_b32 v{p+2}, v{p+3}',
              f'buffer_store_dwordx4 {vr(p,4)}, v{vaddr}, s[{WS}:{WS+3}], s{S_BASE} offen sc1']
        return l
    l = grp4(0, PK, VZ4)
    for i, x in enumerate(l): put(12 + i // 2, [x])
    l2 = grp4(4, PK + 4, VZ4 + 1)
    for i, x in enumerate(l2[:12]): put(24 + i // 2, [x])
    interleave(a, main, side)
    for x in l2[12:]: a(x)
    A, B = AZ + 32, AZ + 36
    for r in range(4): a(f'v_permlane32_swap_b32 v{A+r}, v{B+r}')
    for r in range(4): a(f'v_add_f32 v{A+r}, v{A+r}, v{B+r}')
    a(f'v_cvt_pk_bf16_f32 v{PK+8}, v{A}, v{A+1}'); a(f'v_cvt_pk_bf16_f32 v{PK+9}, v{A+2}, v{A+3}')
    a(f'v_permlane16_swap_b32 v{PK+8}, v{PK+9}')
    a(f'buffer_store_dwordx2 {vr(PK+8,2)}, v{VZ2}, s[{WS}:{WS+3}], s{S_BASE} offen sc1')
    stamp(a, TS + 1, f's{S_STEP}')
    flag_store(a, VFL, T, f's{S_STEP}')
    step_base(a, S_B2, S_STEP, 2)
    a(f's_cmp_lt_u32 s{S_STEP}, 62'); a(f's_cselect_b32 s{S_B2}, s{S_B2}, {OOB}')
    clear(S_B2)
    a(f's_add_u32 s{S_STEP}, s{S_STEP}, 1')
    step_base(a, S_BASE, S_STEP)
    a(f's_cmp_lt_u32 s{S_STEP}, 64')
    a('s_cbranch_scc1 L_b_loop')
    a.waitf(vm=0)
    flag_store(a, VFL, T, f's{S_STEP}')
    stamp_dump(a, TS, 4, T)
    a('s_branch L_end')

def role_r(a):
    a.c('===== R: next memory columns 16r..16r+15 from all heads =====')
    a(f's_sub_u32 s{S_H}, s{S_ROLE}, {R_R}')
    srd(a, SA, 'mem0', 10240)
    a.waitf(lg=0)
    smark(a, 0)
    get_parity(a)
    VE, VP, VC, VZ, VVO, VW, VRD, VM, VPF, IDX, T = 2, 4, 5, 7, 8, 10, 11, 12, 13, 14, 16
    EX, OX, ZF, PM, CX, AM, AC, VO, TS = 24, 40, 56, 64, 68, 84, 88, 96, 136
    a(f"""
    s_add_u32 s40, s{S_WAVE}, 2
    s_lshl_b32 s40, s40, 14
    v_bfe_u32 v{T}, v{V_LANE}, 3, 1         ; hf
    v_and_b32 v{T+1}, 7, v{V_LANE}          ; i
    v_lshrrev_b32 v{T+2}, 4, v{V_LANE}      ; g
    v_mul_u32_u24 v{VE}, 768, v{T}
    v_lshl_add_u32 v{VE}, v{T+2}, 7, v{VE}
    v_lshl_add_u32 v{VE}, v{T+1}, 4, v{VE}
    v_add_u32 v{VE}, s40, v{VE}
    v_add_u32 v{VE+1}, 3072, v{VE}
    v_mul_u32_u24 v{VP}, 1536, v{T+2}
    v_lshl_add_u32 v{VP}, v{T}, 6, v{VP}
    v_lshl_add_u32 v{VP}, v{T+1}, 3, v{VP}
    v_add_u32 v{VP}, s40, v{VP}
    v_lshrrev_b32 v{T+3}, 5, v{V_LANE}
    v_mul_u32_u24 v{VC}, 768, v{T+3}
    v_and_b32 v{T+3}, 1, v{T+2}
    v_lshl_add_u32 v{VC}, v{T+3}, 4, v{VC}
    v_add_u32 v{VC}, s40, v{VC}
    v_add_u32 v{VC+1}, 3072, v{VC}
    s_add_u32 s30, s{S_H}, 8
    s_lshl_b32 s30, s30, 14
    s_lshl_b32 s31, s{S_WAVE}, 11
    s_add_u32 s30, s30, s31
    v_lshl_add_u32 v{VZ}, v{V_LANE}, 4, s30
    s_lshl_b32 s30, s{S_H}, 15
    s_lshl_b32 s31, s{S_WAVE}, 13
    s_add_u32 s30, s30, s31
    v_lshl_add_u32 v{VVO}, v{V_LANE}, 4, s30
    v_add_u32 v{VVO+1}, 4096, v{VVO}
    v_lshlrev_b32 v{VW}, 8, v{T+3}
    v_lshrrev_b32 v{T+3}, 5, v{V_LANE}
    v_lshl_add_u32 v{VW}, v{T+3}, 7, v{VW}
    v_and_b32 v{T+3}, 15, v{V_LANE}
    v_lshl_add_u32 v{VW}, v{T+3}, 2, v{VW}
    s_lshl_b32 s30, s{S_WAVE}, 9
    v_add_u32 v{VW}, s30, v{VW}
    v_bfe_u32 v{T}, v{V_LANE}, 2, 3
    v_and_b32 v{T+1}, 3, v{V_LANE}
    v_lshrrev_b32 v{T+2}, 5, v{V_LANE}
    v_lshl_add_u32 v{T+1}, v{T+1}, 1, v{T+2}
    v_lshlrev_b32 v{VRD}, 6, v{T}
    v_lshl_add_u32 v{VRD}, v{T+1}, 3, v{VRD}
    s_lshl_b32 s30, s{S_H}, 8
    s_cmp_ge_u32 s{S_H}, 32
    s_cselect_b32 s31, 8192, 0
    s_add_u32 s30, s30, s31
    v_lshl_add_u32 v{VM}, v{V_LANE}, 2, s30
    v_mul_u32_u24 v{T}, 1280, v{T}
    v_lshl_add_u32 v{T}, v{T+1}, 2, v{T}
    s_lshl_b32 s30, s{S_H}, 5
    buffer_load_dword v{T+4}, v{T}, s[{SA}:{SA+3}], s30 offen
    s_mul_i32 s30, s{S_H}, 6554
    s_lshr_b32 s30, s30, 16
    s_lshl_b32 s30, s30, 2
    s_lshl_b32 s31, s{S_WAVE}, 10
    s_add_u32 s30, s30, s31
    s_add_u32 s30, s30, {flag_off(R_VO)}
    v_and_b32 v{T}, 7, v{V_LANE}
    v_lshl_add_u32 v{VPF}, v{T}, 7, s30
    v_and_b32 v{IDX}, 8, v{V_LANE}
    v_cmp_eq_u32 vcc, 0, v{IDX}
    v_mov_b32 v{IDX}, 0xeeee
    v_mov_b32 v{IDX+1}, 0x4444
    v_cndmask_b32 v{IDX}, v{IDX}, v{IDX+1}, vcc
    v_mov_b32 v{T+5}, -1
    """)
    assert all((r * 6554) >> 16 == r // 10 for r in range(40))
    a(f's_lshl_b32 s{S_STEP}, s{S_WAVE}, 4')
    a(f's_cmp_eq_u32 s{S_WAVE}, 0'); a('s_cselect_b64 vcc, -1, 0')
    a(f'v_cndmask_b32 v{T+4}, v{T+5}, v{T+4}, vcc')
    for k in range(16):
        step_base(a, S_BASE, S_STEP, k)
        a(f'buffer_store_dword v{T+4 if k == 0 else T+5}, v{VM}, s[{WS}:{WS+3}], s{S_BASE} offen sc1')
    arrive(a, T)
    wait_all_arrived(a, T)
    smark(a, 1)
    stamp_init(a, TS, 4); smark_out(a, TS + 3, 2)
    a(f's_mov_b32 s{S_STEP}, 0'); a('s_mov_b32 s57, 0'); a(f's_mov_b32 s50, {VO_BASE}'); a('s_mov_b32 s51, 0')
    a.label('L_r_loop')
    step_base(a, S_BASE, S_STEP)
    step_base(a, S_B2, S_STEP, 1)
    ok = a.lab('rok'); lp = a.lab('rpl')
    a(f's_cmp_gt_u32 s57, s{S_STEP}'); a(f's_cbranch_scc1 {ok}')
    a('s_mov_b32 s31, 0')
    a.label(lp)
    a(f"""
    buffer_load_dword v{T}, v{VPF}, s[{WS}:{WS+3}], 0 offen sc1
    s_add_u32 s31, s31, 1
    s_cmp_gt_u32 s31, {SPIN_MAX}
    s_cbranch_scc1 L_abort
    v_min_u32_dpp v{T}, v{T}, v{T} row_ror:4 row_mask:0xf bank_mask:0xf
    v_min_u32_dpp v{T}, v{T}, v{T} row_ror:2 row_mask:0xf bank_mask:0xf
    v_min_u32_dpp v{T}, v{T}, v{T} row_ror:1 row_mask:0xf bank_mask:0xf
    v_readfirstlane_b32 s57, v{T}
    s_cmp_le_u32 s57, s{S_STEP}
    s_cbranch_scc1 {lp}
    """)
    a.label(ok)
    for k in range(8):
        a(f'buffer_load_dwordx4 {vr(VO + 4*k, 4)}, v{VVO + k // 4}, s[{WS}:{WS+3}], s50 offen offset:{(k % 4) * 1024} sc1')
    for i in range(16): a(f'v_mov_b32 v{OX+i}, 0')
    for i in range(4): a(f'v_mov_b32 v{AM+i}, 0')
    for u in range(4):
        a(f'v_swap_b32 v{VO+8*u+1}, v{VO+8*u+4}'); a(f'v_swap_b32 v{VO+8*u+3}, v{VO+8*u+6}')
    stamp(a, TS + 2, f's{S_STEP}')
    ld = [f'buffer_load_dwordx4 {vr(EX + 4*u, 4)}, v{VE + u // 2}, s[{WS}:{WS+3}], s{S_BASE} offen offset:{(u % 2) * 1536} sc1' for u in range(4)]
    poll(a, ld, range(EX, EX + 16), T, 'pe')
    for u in range(4): a(sm(OX + 4*u, EX + 4*u, VO + 8*u, IDX))
    ld = [f'buffer_load_dwordx4 {vr(ZF + 4*i, 4)}, v{VZ}, s[{WS}:{WS+3}], s{S_BASE} offen offset:{i*1024} sc1' for i in range(2)]
    ld += [f'buffer_load_dwordx2 {vr(PM + 2*i, 2)}, v{VP}, s[{WS}:{WS+3}], s{S_BASE} offen offset:{512 + 768*i} sc1' for i in range(2)]
    ld += [f'buffer_load_dwordx4 {vr(CX + 4*u, 4)}, v{VC + u // 2}, s[{WS}:{WS+3}], s{S_BASE} offen offset:{640 + (u % 2) * 1536} sc1' for u in range(4)]
    poll(a, ld, range(ZF, CX + 16), T, 'pl')
    stamp(a, TS, f's{S_STEP}')
    a(sm(AM, PM, ZF, IDX))
    for r in range(4): a(f'v_mul_f32 v{AC+r}, v{OX+r}, v{CX+r}')
    for u in range(1, 4):
        for r in range(4): a(f'v_fmac_f32 v{AC+r}, v{OX+4*u+r}, v{CX+4*u+r}')
    for r in range(4): a(f'v_add_f32 v{AC+r}, v{AC+r}, v{AM+r}')
    a(f"""
    v_add_u32 v{T}, s51, v{VW}
    v_permlane32_swap_b32 v{AC}, v{AC+2}
    v_permlane32_swap_b32 v{AC+1}, v{AC+3}
    v_add_f32 v{AC}, v{AC}, v{AC+2}
    v_add_f32 v{AC+1}, v{AC+1}, v{AC+3}
    ds_write2_b32 v{T}, v{AC}, v{AC+1} offset0:0 offset1:16
    v_add_u32 v{T}, s51, v{VRD}
    """)
    a(f's_cmp_lg_u32 s{S_WAVE}, 0')
    a.waitf(lg=0)
    a('s_barrier')
    nx = a.lab('rnx')
    a.branch(f's_cbranch_scc1 {nx}', nofence=True)
    a(f"""
    ds_read2_b64 {vr(EX,4)}, v{T} offset0:0 offset1:64
    ds_read2_b64 {vr(EX+4,4)}, v{T} offset0:128 offset1:192
    v_add_f32 v{EX}, v{EX}, v{EX+2}
    v_add_f32 v{EX+1}, v{EX+1}, v{EX+3}
    v_add_f32 v{EX+4}, v{EX+4}, v{EX+6}
    v_add_f32 v{EX+5}, v{EX+5}, v{EX+7}
    v_add_f32 v{EX}, v{EX}, v{EX+4}
    v_add_f32 v{EX+1}, v{EX+1}, v{EX+5}
    v_cvt_pk_bf16_f32 v{EX}, v{EX}, v{EX+1}
    buffer_store_dword v{EX}, v{VM}, s[{WS}:{WS+3}], s{S_B2} offen sc1
    """)
    a.label(nx)
    stamp(a, TS + 1, f's{S_STEP}')
    a(f"""
    s_xor_b32 s51, s51, 2048
    s_add_u32 s50, s50, {40*32768}
    s_add_u32 s{S_STEP}, s{S_STEP}, 1
    s_cmp_lt_u32 s{S_STEP}, 63
    s_cbranch_scc1 L_r_loop
    """)
    a.waitf(vm=0)
    stamp_dump(a, TS, 4, T)
    a('s_branch L_end')

def role_c(a):
    a.c('===== C: q, k of the memory rows; scores and softmax of memory rows and segment rows =====')
    a(f's_mov_b32 s{S_H}, s{S_ROLE}')
    srd(a, SA, 'Wq', 640 * 12288); srd(a, SB, 'Wk', 640 * 12288)
    a.waitf(lg=0)
    smark(a, 0)
    get_parity(a)
    VG, VWL, VRD, IDX, VIW, VIW3, VIR, VKX, A0, A1, A2, A3, VFL, T = 2, 7, 8, 9, 11, 12, 13, 14, 15, 16, 17, 18, 19, 20
    AF, AQ, AK, STG, SBF, Y, TS = 24, 64, 76, 88, 112, 136, 140
    VZERO = 10
    assert TS + 4 <= WORK
    a(f"""
    s_lshr_b32 s43, s{S_H}, 3
    s_add_u32 s43, s43, 2
    s_lshl_b32 s43, s43, 14
    s_and_b32 s30, s{S_H}, 7
    s_mul_i32 s30, s30, 768
    s_add_u32 s43, s43, s30
    v_lshl_add_u32 v{T}, v{V_LANE}, 4, s43
    """)
    for i in range(4): a(f'v_mov_b32 v{AF+i}, -1')
    a(f's_lshl_b32 s{S_STEP}, s{S_WAVE}, 4')
    a('s_mov_b32 exec_hi, 0xffff')
    for k in range(16):
        step_base(a, S_BASE, S_STEP, k)
        a(f'buffer_store_dwordx4 {vr(AF,4)}, v{T}, s[{WS}:{WS+3}], s{S_BASE} offen sc1')
    a('s_mov_b64 exec, -1')
    arrive(a, T)
    order = [('q', j, t) for t in range(10) for j in range(3)] + [('k', j, t) for j in range(3) for t in range(10)]
    U = Units(order, {4, 10, 16, 21, 25, 29, 33, 37, 41, 45, 49, 52, 55, 58}, STG, VWL)
    HB = WORK - 8 * NL; hold = U.hold(HB)
    a(f's_mul_i32 s41, s{S_H}, 384')
    load_weights(a, [WMat(SA, 12288, 24, 20, 4, True, etile_sreg, lambda j, ks: hold(('q', j, ks >> 1)) + 4 * (ks & 1), 3),
                     WMat(SB, 12288, 24, 20, 4, True, etile_sreg, lambda j, ks: hold(('k', j, ks >> 1)) + 4 * (ks & 1), 3)], 2, sbase=[41, 41])
    h_setup(a, VG, VWL, VRD, IDX)
    U.park(a, HB)
    a(f"""
    v_mov_b32 v{VZERO}, 0
    v_and_b32 v{T}, 15, v{V_LANE}
    v_lshrrev_b32 v{T+1}, 4, v{V_LANE}
    v_lshlrev_b32 v{T+2}, 5, v{T}
    v_lshl_add_u32 v{T+2}, v{T+1}, 3, v{T+2}
    s_lshl_b32 s30, s{S_WAVE}, 10
    s_add_u32 s30, s30, {L_QI}
    v_add_u32 v{VIW}, s30, v{T+2}
    s_lshl_b32 s30, s{S_WAVE}, 9
    s_add_u32 s30, s30, {L_QI + 4096}
    v_add_u32 v{VIW3}, s30, v{T+2}
    v_lshlrev_b32 v{VIR}, 3, v{V_LANE}
    v_add_u32 v{VIR}, {L_QI}, v{VIR}
    s_mov_b32 s44, {f32(CSC)}
    s_mov_b32 s45, {L_KX}
    s_mov_b32 s57, 0
    s_mov_b32 s{S_STEP}, 0
    s_mul_i32 s50, s{S_H}, 12288
    """)
    flag_addr(a, VFL)
    smark(a, 1)
    wait_all_arrived(a, T)
    smark(a, 2)
    stamp_init(a, TS, 4); smark_out(a, TS + 3, 3)
    step_base(a, S_BASE, S_STEP)
    a(f's_cmp_eq_u32 s{S_WAVE}, 1'); a('s_cbranch_scc1 L_c_d')
    a(f's_cmp_ge_u32 s{S_WAVE}, 2'); a('s_cbranch_scc1 L_c_x')

    def kx_dma(sbuf):
        for f in range(12):
            a(f's_add_u32 m0, s{sbuf}, {f*1024}')
            a(f's_add_u32 s34, s50, {f*1024}')
            a(f'buffer_load_dwordx4 v{A0}, s[{WS}:{WS+3}], s34 offen sc1 lds')

    QF, Q3, KF = SBF, SBF + 4, SBF + 12
    def passes(kind):
        for i in range(24): a(f'v_mov_b32 v{AQ+i}, 0')
        for i in (0, 1, 4, 5): a(f'v_mov_b32 v{Q3+i}, 0')
        for n in range(3): [a(x) for x in U.fetch(n)]
        a(f"""
        s_lshl_b32 s30, s{S_WAVE}, 10
        s_add_u32 s30, s30, s45
        v_lshl_add_u32 v{VKX}, v{V_LANE}, 4, s30
        s_xor_b32 s46, s45, {L_KX ^ (L_KX + 12288)}
        """)
        gather_mem(a, VG, VRD, AF, T)
        stamp(a, TS, f's{S_STEP}')
        main = []; side = {}
        def put(g, l): side.setdefault(g, []).extend(l)
        for pos, u in enumerate(order):
            acc = (AQ if u[0] == 'q' else AK) + 4*u[1]
            main.append([sm(acc, AF + 4*u[2], U.reg(u), IDX)] + U.after(u))
        def img(acc, j, off):
            c = acc + 4*j
            return [f'v_cvt_pk_bf16_f32 v{c}, v{c}, v{c+1}', f'v_cvt_pk_bf16_f32 v{c+1}, v{c+2}, v{c+3}',
                    f'ds_write_b64 v{VIW3 if j == 2 else VIW}, {vr(c,2)} offset:{off + (512 if j == 1 else 0)}']
        put(12, [f'ds_read_b128 {vr(KF,4)}, v{VKX}']); put(14, [f'ds_read_b128 {vr(KF+4,4)}, v{VKX} offset:4096'])
        put(18, [f'ds_read_b128 {vr(KF+8,4)}, v{VKX} offset:8192'])
        put(20, [f's_lshl_b32 s30, s{S_WAVE}, 10', f'v_add_u32 v{T}, s30, v{VIR}'])
        put(22, [f's_lshl_b32 s30, s{S_WAVE}, 9', f'v_add_u32 v{T+1}, s30, v{VIR}'])
        put(24, [f's_lshl_b32 s30, s{S_WAVE}, 10', 's_add_u32 s30, s30, s46', f'v_lshl_add_u32 v{T+2}, v{V_LANE}, 4, s30'])
        for j in range(3): put(31 + j, img(AQ, j, 0))
        put(34, [f'ds_read_b64_tr_b16 {vr(QF,2)}, v{T}', f'ds_read_b64_tr_b16 {vr(QF+2,2)}, v{T} offset:512'])
        put(35, [f'ds_read_b64_tr_b16 {vr(Q3+2,2)}, v{T+1} offset:4096'])
        put(40, [f'v_mfma_f32_16x16x32_bf16 {vr(AQ,4)}, {vr(KF,4)}, {vr(QF,4)}, 0',
                 f'v_mfma_f32_16x16x32_bf16 {vr(AQ+4,4)}, {vr(KF+4,4)}, {vr(QF,4)}, 0',
                 f'v_mfma_f32_16x16x32_bf16 {vr(AQ,4)}, {vr(KF+8,4)}, {vr(Q3+2,4)}, {vr(AQ,4)}',
                 f'v_mfma_f32_16x16x32_bf16 {vr(AQ+4,4)}, {vr(KF+8,4)}, {vr(Q3,4)}, {vr(AQ+4,4)}'])
        put(42, img(AK, 0, 6144))
        fo = []
        for jt in range(2):
            for c in range(2):
                x0, x1 = AQ + 4*jt + c, AQ + 4*jt + 2 + c
                fo += [f'v_add_f32_dpp v{Y+2*jt+c}, v{x0}, v{x0} row_ror:8 row_mask:0xf bank_mask:0x3',
                       f'v_add_f32_dpp v{Y+2*jt+c}, v{x1}, v{x1} row_ror:8 row_mask:0xf bank_mask:0xc']
        fo = fo[0::2] + fo[1::2]
        for i in range(4): put(44 + i // 2, [fo[i]])
        for i in range(4): put(46 + i // 2, [fo[4 + i]])
        if kind != 'm': put(48, [f'ds_write_b128 v{T+2}, {vr(Y,4)}'])
        put(49, [lambda: a.waitf(lg=0), 's_barrier'])
        put(52, img(AK, 1, 6144))
        tail = []
        if kind == 'm':
            put(49, [f'ds_read_b128 {vr(AQ + 4*(w-1), 4)}, v{T+2} offset:{w*1024}' for w in (1, 2, 3)])
            for ks in range(6):
                put(50 + ks, [f'ds_read_b64_tr_b16 {vr(SBF + 4*ks + 2*i, 2)}, v{VIR} offset:{ks*1024 + i*512}' for i in range(2)])
            MX, LX, TT = T, T + 1, T + 3
            sx = []
            for i in range(4): sx.append(f'v_add_f32 v{Y+i}, v{Y+i}, v{AQ+i}')
            for i in range(4): sx.append(f'v_add_f32 v{AQ+4+i}, v{AQ+4+i}, v{AQ+8+i}')
            for i in range(4): sx.append(f'v_add_f32 v{Y+i}, v{Y+i}, v{AQ+4+i}')
            sx += [f'v_max3_f32 v{MX}, v{Y}, v{Y+1}, v{Y+2}', f'v_max_f32 v{MX}, v{MX}, v{Y+3}',
                   f'v_max_f32_dpp v{MX}, v{MX}, v{MX} row_ror:8 row_mask:0xf bank_mask:0xf']
            sx += allred('v_max_f32', MX, TT)
            sx += [f'v_mul_f32 v{MX}, s44, v{MX}']
            sx += [f'v_fma_f32 v{Y+i}, v{Y+i}, s44, -v{MX}' for i in range(4)]
            sx += [f'v_exp_f32 v{Y+i}, v{Y+i}' for i in range(4)]
            sx += [f'v_cvt_pk_bf16_f32 v{AQ}, v{Y}, v{Y+1}', f'v_cvt_pk_bf16_f32 v{AQ+1}, v{Y+2}, v{Y+3}',
                   f'buffer_store_dwordx2 {vr(AQ,2)}, v{A0}, s[{WS}:{WS+3}], s{S_BASE} offen sc1']
            sx2 = [f'v_add_f32 v{LX}, v{Y}, v{Y+1}', f'v_add_f32 v{TT}, v{Y+2}, v{Y+3}', f'v_add_f32 v{LX}, v{LX}, v{TT}',
                   f'v_add_f32_dpp v{LX}, v{LX}, v{LX} row_ror:8 row_mask:0xf bank_mask:0xf'] + allred('v_add_f32', LX, TT)
            n = 0
            for g in range(55, 60): put(g, sx[n:n+3]); n += 3
            tail = (sx[n:], sx2)
        if kind == 'x':
            for ks in range(4):
                put(50 + ks, [f'buffer_load_dwordx4 {vr(SBF + 4*ks, 4)}, v{A0}, s[{WS}:{WS+3}], s50 offen offset:{ks*1024} sc1'])
            for t in range(4):
                put(54 + t, [f'buffer_load_dwordx2 {vr(SBF + 16 + 2*t, 2)}, v{A1}, s[{WS}:{WS+3}], s50 offen offset:{t*1024} sc1'])
        interleave(a, main, side)
        if kind == 'm':
            for x in tail[0][:6]: a(x)
        for x in img(AK, 2, 6144): a(x)
        if kind == 'm':
            for x in tail[0][6:12]: a(x)
        a.waitf(lg=0)
        a('s_barrier')
        return tail
    def next_step(lab):
        a(f"""
        s_mov_b32 s45, s46
        s_add_u32 s{S_STEP}, s{S_STEP}, 1
        """)
        step_base(a, S_BASE, S_STEP)
        a(f's_cmp_lt_u32 s{S_STEP}, 64')
        a(f's_cbranch_scc1 {lab}')
        a.waitf(vm=0)
        stamp_dump(a, TS, 4, T)
        a('s_branch L_end')

    a(f"""
    v_bfe_u32 v{T}, v{V_LANE}, 3, 1
    v_lshrrev_b32 v{T+1}, 5, v{V_LANE}
    v_and_b32 v{T+2}, 7, v{V_LANE}
    v_bfe_u32 v{T+3}, v{V_LANE}, 4, 1
    v_lshl_add_u32 v{A0}, v{T}, 1, v{T+1}
    v_lshlrev_b32 v{A0}, 7, v{A0}
    v_lshl_add_u32 v{A0}, v{T+2}, 4, v{A0}
    v_lshl_add_u32 v{A0}, v{T+3}, 3, v{A0}
    v_add_u32 v{A0}, s43, v{A0}
    v_lshlrev_b32 v{A1}, 6, v{T+3}
    v_lshl_add_u32 v{A1}, v{T+2}, 3, v{A1}
    v_lshl_add_u32 v{A1}, v{T+1}, 2, v{A1}
    v_lshlrev_b32 v{A2}, 2, v{T+2}
    v_add_u32 v{A2}, 128, v{A2}
    v_cmp_eq_u32 s[64:65], 1, v{T}
    v_cndmask_b32 v{A1}, v{A1}, v{A2}, s[64:65]
    v_add_u32 v{A1}, s43, v{A1}
    """)
    flag_store(a, VFL, T, 64)
    a.label('L_c_m_loop')
    tail = passes('m')
    MX, LX, M2, TT = T, T + 1, T + 2, T + 3
    for ks in range(6):
        for i in range(2): a(f'ds_read_b64_tr_b16 {vr(AF + 4*ks + 2*i, 2)}, v{VIR} offset:{6144 + ks*1024 + i*512}')
    for x in tail[0][12:]: a(x)
    rest = list(tail[1]); N = AK
    for ks in range(6):
        a(f'v_mfma_f32_16x16x32_bf16 {vr(N,4)}, {vr(AF + 4*ks, 4)}, {vr(SBF + 4*ks, 4)}, {vr(N,4) if ks else 0}')
        if rest: a(rest.pop(0))
    for x in rest: a(x)
    a(f"""
    v_permlane32_swap_b32 v{N}, v{N+2}
    v_permlane32_swap_b32 v{N+1}, v{N+3}
    v_add_f32 v{N}, v{N}, v{N+2}
    v_add_f32 v{N+1}, v{N+1}, v{N+3}
    v_add_f32_dpp v{N}, v{N}, v{N} row_ror:8 row_mask:0xf bank_mask:0xf
    v_add_f32_dpp v{N+1}, v{N+1}, v{N+1} row_ror:8 row_mask:0xf bank_mask:0xf
    v_mul_f32 v{N}, s44, v{N}
    v_mul_f32 v{N+1}, s44, v{N+1}
    v_max3_f32 v{M2}, v{N}, v{N+1}, v{MX}
    """)
    for x in allred('v_max_f32', M2, TT): a(x)
    a(f"""
    v_sub_f32 v{N}, v{N}, v{M2}
    v_sub_f32 v{N+1}, v{N+1}, v{M2}
    v_sub_f32 v{MX}, v{MX}, v{M2}
    v_exp_f32 v{N}, v{N}
    v_exp_f32 v{N+1}, v{N+1}
    v_exp_f32 v{MX}, v{MX}
    v_add_f32 v{M2}, v{N}, v{N+1}
    """)
    for x in allred('v_add_f32', M2, TT): a(x)
    a(f"""
    v_fmac_f32 v{M2}, v{MX}, v{LX}
    v_rcp_f32 v{M2}, v{M2}
    v_mul_f32 v{N}, v{N}, v{M2}
    v_mul_f32 v{N+1}, v{N+1}, v{M2}
    v_mul_f32 v{MX}, v{MX}, v{M2}
    v_cvt_pk_bf16_f32 v{N}, v{N}, v{N+1}
    v_cndmask_b32 v{N}, v{N}, v{MX}, s[64:65]
    buffer_store_dword v{N}, v{A1}, s[{WS}:{WS+3}], s{S_BASE} offen offset:512 sc1
    """)
    stamp(a, TS + 1, f's{S_STEP}')
    next_step('L_c_m_loop')

    a.label('L_c_d', fresh=True)
    a(f"""
    v_lshlrev_b32 v{A0}, 4, v{V_LANE}
    s_add_u32 s50, s50, {QKV_BASE + QKV_SZ}
    s_lshl_b32 s56, s{S_H}, 7
    s_add_u32 s56, s56, {flag_off(R_PJ + 32)}
    """)
    flag_store(a, VFL, T, 64)
    need_flag4(a, 57, S_STEP, 56, T, VZERO)
    kx_dma(45)
    a.label('L_c_d_loop')
    passes('d')
    a(f's_add_u32 s50, s50, {32*12288}')
    a(f's_add_u32 s58, s{S_STEP}, 1'); a('s_min_u32 s59, s58, 63')
    need_flag4(a, 57, 59, 56, T, VZERO)
    a('s_cmp_lt_u32 s58, 64'); a(f's_cselect_b32 s50, s50, {OOB}')
    kx_dma(46)
    stamp(a, TS + 1, f's{S_STEP}')
    next_step('L_c_d_loop')

    a.label('L_c_x', fresh=True)
    a(f"""
    s_and_b32 s47, s{S_WAVE}, 1
    s_lshl_b32 s30, s47, 12
    v_lshl_add_u32 v{A0}, v{V_LANE}, 4, s30
    s_lshl_b32 s30, s47, 3
    s_add_u32 s30, s30, 8192
    v_lshl_add_u32 v{A1}, v{V_LANE}, 4, s30
    s_lshl_b32 s30, s47, 10
    v_lshl_add_u32 v{A2}, v{V_LANE}, 4, s30
    v_and_b32 v{T}, 15, v{V_LANE}
    v_lshrrev_b32 v{T+1}, 4, v{V_LANE}
    s_lshl_b32 s30, s47, 8
    s_add_u32 s30, s30, 2048
    v_lshl_add_u32 v{A3}, v{T}, 4, s30
    v_lshl_add_u32 v{A3}, v{T+1}, 2, v{A3}
    s_lshl_b32 s30, s47, 4
    v_add_u32 v{T}, s30, v{T}
    v_lshlrev_b32 v{T+1}, 2, v{T+1}
    v_sub_u32 v{T}, v{T}, v{T+1}
    s_add_u32 s50, s50, {QKV_BASE}
    s_lshl_b32 s56, s{S_H}, 7
    s_add_u32 s56, s56, {flag_off(R_PJ)}
    s_mul_i32 s51, s{S_H}, 2560
    s_add_u32 s51, s51, {PX_BASE}
    """)
    for jt in range(2):
        for r in range(4): a(f'v_cmp_le_i32 s[{64+2*(4*jt+r)}:{65+2*(4*jt+r)}], {16*jt+r}, v{T}')
    a.label('L_c_x_loop')
    need_flag4(a, 57, S_STEP, 56, T, VZERO)
    passes('x')
    X = AQ; N = AQ + 8
    a(f'v_lshl_add_u32 v{T}, v{V_LANE}, 4, s45'); a(f'v_add_u32 v{T+1}, 8, v{T}')
    ops = []
    for ks in range(6):
        for jt in range(3):
            b = AF + 4 * (len(ops) % 10)
            if jt == 2: rd = [f'ds_read_b64_tr_b16 {vr(b + 2*i, 2)}, v{VIR} offset:{6144 + ks*1024 + i*512}' for i in range(2)]
            elif ks < 4: rd = [f'ds_read_b128 {vr(b,4)}, v{T} offset:{jt*4096 + ks*1024}']
            else: rd = [f'ds_read2st64_b64 {vr(b,4)}, v{T+jt} offset0:{16 + 4*(ks-4)} offset1:{18 + 4*(ks-4)}']
            c = vr(X + 4*jt, 4)
            ops.append((rd, f'v_mfma_f32_16x16x32_bf16 {c}, {vr(b,4)}, {vr(SBF + 4*ks, 4)}, {c if ks else 0}'))
    for i in range(9): [a(x) for x in ops[i][0]]
    for i in range(18):
        a(ops[i][1])
        if i + 9 < 18: [a(x) for x in ops[i + 9][0]]
    MX, SM, TT = T, T + 1, T + 3
    a(f'v_mov_b32 v{TT}, 0xf149f2ca')
    a(f"""
    v_permlane32_swap_b32 v{N}, v{N+2}
    v_permlane32_swap_b32 v{N+1}, v{N+3}
    v_add_f32 v{N}, v{N}, v{N+2}
    v_add_f32 v{N+1}, v{N+1}, v{N+3}
    """)
    for i in range(8): a(f'v_cndmask_b32 v{X+i}, v{TT}, v{X+i}, s[{64+2*i}:{65+2*i}]')
    a(f"""
    v_max3_f32 v{MX}, v{X}, v{X+1}, v{X+2}
    v_max3_f32 v{SM}, v{X+3}, v{X+4}, v{X+5}
    v_max3_f32 v{MX}, v{MX}, v{X+6}, v{X+7}
    v_max3_f32 v{SM}, v{SM}, v{X+8}, v{X+9}
    v_max_f32 v{MX}, v{MX}, v{SM}
    """)
    for x in allred('v_max_f32', MX, TT): a(x)
    a(f'v_mul_f32 v{MX}, s44, v{MX}')
    for i in range(10): a(f'v_fma_f32 v{X+i}, v{X+i}, s44, -v{MX}')
    for i in range(10): a(f'v_exp_f32 v{X+i}, v{X+i}')
    a(f'v_add_f32 v{SM}, v{X}, v{X+1}'); a(f'v_add_f32 v{TT}, v{X+2}, v{X+3}')
    for i in range(4, 10, 2):
        a(f'v_add_f32 v{SM}, v{SM}, v{X+i}'); a(f'v_add_f32 v{TT}, v{TT}, v{X+i+1}')
    a(f'v_add_f32 v{SM}, v{SM}, v{TT}')
    for x in allred('v_add_f32', SM, TT): a(x)
    a(f'v_rcp_f32 v{SM}, v{SM}')
    for i in range(10): a(f'v_mul_f32 v{X+i}, v{X+i}, v{SM}')
    for i in range(5): a(f'v_cvt_pk_bf16_f32 v{AK+i}, v{X+2*i}, v{X+2*i+1}')
    a(f'buffer_store_dwordx4 {vr(AK,4)}, v{A2}, s[{WS}:{WS+3}], s51 offen sc1')
    a(f'buffer_store_dword v{AK+4}, v{A3}, s[{WS}:{WS+3}], s51 offen sc1')
    stamp(a, TS + 1, f's{S_STEP}')
    a(f's_add_u32 s50, s50, {32*12288}'); a(f's_add_u32 s51, s51, {32*2560}'); a(f's_add_u32 s58, s{S_STEP}, 1')
    a.waitf(vm=0)
    flag_store(a, VFL, T, 's58')
    next_step('L_c_x_loop')
```

```python
from emit import *
MB = 1 << 20
NAME = 'gated_mix__memory_aug_recurrent_mem_tr__ssm_conv_s5__prompt'
WS_BYTES = 256 * MB
QKV_BASE = 64 * MB; QKV_SZ = 24 * MB
VO_BASE = 136 * MB
PX_BASE = 216 * MB
HT_BASE = 222 * MB
BB_BASE = 228 * MB
G_BASE = 234 * MB
FL_BASE = 235 * MB
TS_BASE = 236 * MB
OOB = 0x7ff00000
KA = dict(x=0, mem0=8, Wq=16, Wk=24, Wv=32, Wo=40, lre=64, lim=72, Bre=80, Bim=88, Cre=96, Cim=104, ldt=112, dsk=120, gw=128, out=136, dbg=144, ws=152)
R_C, R_B, R_R, R_S5A, R_S5B, R_SP, R_PJ, R_VO = 0, 32, 64, 104, 114, 124, 128, 224
S_ROLE, S_WAVE, S_H, S_P2 = 2, 3, 4, 5
WS, SA, SB, SC, DBG = 8, 12, 16, 20, 24
SPIN_MAX = 400000
V_TID, V_LANE = 0, 1

def srd(a, dst, slot, nbytes):
    a(f's_load_dwordx2 s[{dst}:{dst+1}], s[0:1], {KA[slot]}')
    a(f's_mov_b32 s{dst+2}, {nbytes}')
    a(f's_mov_b32 s{dst+3}, 0x20000')

def flag_off(role): return FL_BASE + role * 128

def arrive(a, vt):
    a(f'''
    v_mov_b32 v{vt}, 0
    v_lshlrev_b32 v{vt+1}, 2, v{V_LANE}
    s_lshl_b32 s30, s{S_ROLE}, 7
    s_add_u32 s30, s30, {FL_BASE}
    s_mov_b64 exec, 0xffffffff
    buffer_store_dword v{vt}, v{vt+1}, s[{WS}:{WS+3}], s30 offen sc1
    s_mov_b64 exec, -1
    ''')
    a.waitf(vm=0)
    a('s_barrier')
    l = a.lab('arr')
    a(f'''
    s_cmp_lg_u32 s{S_WAVE}, 0
    s_cbranch_scc1 {l}
    v_mov_b32 v{vt+1}, 1
    s_mov_b64 exec, 1
    buffer_atomic_add v{vt+1}, v{vt}, s[{DBG}:{DBG+3}], 0 offen sc1
    s_mov_b64 exec, -1
    ''')
    a.label(l)

def wait_all_arrived(a, vt):
    l = a.lab('wa')
    a(f'v_mov_b32 v{vt}, 0')
    a('s_mov_b32 s31, 0')
    a.label(l)
    a(f'''
    buffer_load_dword v{vt+1}, v{vt}, s[{DBG}:{DBG+3}], 0 offen sc1
    s_add_u32 s31, s31, 1
    s_cmp_gt_u32 s31, {SPIN_MAX}
    s_cbranch_scc1 L_abort
    v_readfirstlane_b32 s30, v{vt+1}
    s_cmp_lt_u32 s30, 256
    s_cbranch_scc1 {l}
    ''')

class WMat:
    def __init__(s, srd, stride, npiece, nks, R, natural, tile_sreg, dest, ntile):
        s.srd, s.stride, s.np, s.nks, s.R, s.natural = srd, stride, npiece, nks, R, natural
        s.tile_sreg, s.dest, s.ntile = tile_sreg, dest, ntile
        s.rowb = npiece * 16; s.blk = 8 * s.rowb; s.ni = s.blk // 1024
SLOT = 49152

def load_weights(a, mats, vt, sbase=None):
    t0 = vt; vt += 4
    for m in mats:
        m.va = vt; vt += m.ni
        m.lb = vt; m.sg = vt + 1; vt += 2
        magic = {24: 2731, 80: 820}[m.np]
        assert all((i * magic) >> 16 == i // m.np for i in range(m.ni * 64))
        sh = 0 if m.rowb % 256 == 0 else 1
        a(f's_lshr_b32 s30, s{S_WAVE}, 1')
        a(f's_and_b32 s31, s{S_WAVE}, 1')
        if m.natural:
            a('s_lshl_b32 s30, s30, 4'); a('s_lshl_b32 s31, s31, 2')
        else:
            a('s_lshl_b32 s30, s30, 3'); a('s_lshl_b32 s31, s31, 4')
        a('s_add_u32 s30, s30, s31')
        a(f's_mov_b32 s32, {m.stride}')
        for j in range(m.ni):
            a(f'''
            v_add_u32 v{t0}, {64*j}, v{V_LANE}
            v_mul_u32_u24 v{t0+1}, {magic}, v{t0}
            v_lshrrev_b32 v{t0+1}, 16, v{t0+1}
            v_mul_u32_u24 v{t0+2}, {m.np}, v{t0+1}
            v_sub_u32 v{t0}, v{t0}, v{t0+2}
            v_lshrrev_b32 v{t0+2}, {sh}, v{t0+1}
            v_lshlrev_b32 v{t0+2}, 1, v{t0+2}
            v_xor_b32 v{t0}, v{t0}, v{t0+2}
            ''')
            if m.natural:
                a(f'''
                v_and_b32 v{t0+2}, 4, v{t0+1}
                v_add_u32 v{t0+1}, v{t0+1}, v{t0+2}
                ''')
            a(f'''
            v_add_u32 v{t0+1}, s30, v{t0+1}
            v_mul_lo_u32 v{t0+1}, v{t0+1}, s32
            v_lshl_add_u32 v{m.va+j}, v{t0}, 4, v{t0+1}
            ''')
        a(f'''
        v_bfe_u32 v{t0}, v{V_LANE}, 2, 3
        v_lshrrev_b32 v{m.sg}, {sh}, v{t0}
        v_mul_u32_u24 v{m.lb}, {m.rowb}, v{t0}
        v_lshrrev_b32 v{t0}, 5, v{V_LANE}
        v_mul_u32_u24 v{t0}, {2*m.blk}, v{t0}
        v_add_u32 v{m.lb}, v{m.lb}, v{t0}
        v_and_b32 v{t0}, 3, v{V_LANE}
        v_lshl_add_u32 v{m.lb}, v{t0}, 3, v{m.lb}
        ''')
    rounds = []
    for mi, m in enumerate(mats):
        assert m.R * 4 * m.blk <= SLOT
        for k0 in range(0, m.nks, m.R): rounds.append((mi, m, k0, min(m.R, m.nks - k0)))
    def issue(ri):
        mi, m, k0, n = rounds[ri]
        a(f's_mul_i32 s33, s{S_WAVE}, {m.blk}')
        for kl in range(n):
            so = (k0 + kl) * 32 * m.stride
            if sbase is not None and sbase[mi] is not None: a(f's_add_u32 s34, s{sbase[mi]}, {so}')
            else: a(f's_mov_b32 s34, {so}')
            for j in range(m.ni):
                a(f's_add_u32 m0, s33, {(ri % 3) * SLOT + kl * 4 * m.blk + j * 1024}')
                a(f'buffer_load_dwordx4 v{m.va+j}, s[{m.srd}:{m.srd+3}], s34 offen lds')
        return n * m.ni
    cnt = {}
    for ri in range(min(2, len(rounds))): cnt[ri] = issue(ri)
    for ri, (mi, m, k0, n) in enumerate(rounds):
        a.waitf(vm=cnt.get(ri + 1, 0), lg=0)
        a('s_barrier')
        if ri + 2 < len(rounds): cnt[ri + 2] = issue(ri + 2)
        a(f'v_add_u32 v{t0+2}, {(ri % 3) * SLOT}, v{m.lb}')
        for j in range(m.ntile):
            m.tile_sreg(a, j, 35)
            tt = t0 + (j & 1)
            a(f'v_xor_b32 v{tt}, s35, v{m.sg}')
            a(f'v_lshl_add_u32 v{tt}, v{tt}, 5, v{t0+2}')
            for kl in range(n):
                d = m.dest(j, k0 + kl)
                for hf in range(2):
                    a(f'ds_read_b64_tr_b16 {ur(d + 2*hf, 2)}, v{tt} offset:{(4*kl + hf) * m.blk}')
    a.waitf(lg=0)
    a('s_barrier')

def etile_sreg(a, j, sd):
    if j < 2:
        a(f's_lshl_b32 s{sd}, s{S_WAVE}, 1')
        if j: a(f's_add_u32 s{sd}, s{sd}, 1')
    else:
        a(f's_add_u32 s{sd}, s{S_WAVE}, 8')
def dtile_sreg(a, j, sd):
    a(f's_mul_i32 s{sd}, s{S_WAVE}, 10')
    if j: a(f's_add_u32 s{sd}, s{sd}, {j}')

def interleave(a, main, side, start=0, per=1):
    for gi, g in enumerate(main):
        for x in g:
            x() if callable(x) else a(x)
        for x in side.get(gi, []):
            x() if callable(x) else a(x)

def stamp(a, vreg, lane, cyc=False):
    if not a.opt.get('ts'): return
    keep = list(a.lg)
    a('s_memtime s[98:99]' if cyc else 's_memrealtime s[98:99]'); a.waitf(lg=0)
    a.lg = keep
    if isinstance(lane, str):
        a(f's_mov_b32 m0, {lane}'); a(f'v_writelane_b32 v{vreg}, s98, m0')
    else:
        a(f'v_writelane_b32 v{vreg}, s98, {lane}')
def stamp_init(a, vreg, n):
    if not a.opt.get('ts'): return
    for i in range(n): a(f'v_mov_b32 v{vreg+i}, 0')
def stamp_dump(a, vreg, n, vt):
    if not a.opt.get('ts'): return
    a(f'''
    s_lshl_b32 s30, s{S_ROLE}, 12
    s_lshl_b32 s31, s{S_WAVE}, 10
    s_add_u32 s30, s30, s31
    s_add_u32 s30, s30, {TS_BASE}
    v_lshlrev_b32 v{vt}, 2, v{V_LANE}
    ''')
    for i in range(n): a(f'buffer_store_dword v{vreg+i}, v{vt}, s[{WS}:{WS+3}], s30 offen offset:{256*i}')
    a.waitf(vm=0)
```

```python
import re
REG = re.compile(r'^(-|abs\()?([vas])(?:(\d+)|\[(\d+):(\d+)\])\)?$')
TRANS = ('v_exp_f32', 'v_log_f32', 'v_rcp_f32', 'v_rsq_f32', 'v_sqrt_f32', 'v_sin_f32', 'v_cos_f32')

def regs_of(op):
    op = op.strip()
    if op in ('vcc',): return {('s', 'vcc')}
    if op in ('vcc_lo', 'vcc_hi'): return {('s', 'vcc')}
    if op in ('exec', 'exec_lo', 'exec_hi'): return {('s', 'exec')}
    if op == 'm0': return {('s', 'm0')}
    m = REG.match(op)
    if not m: return set()
    k = m.group(2)
    if m.group(3) is not None: return {(k, int(m.group(3)))}
    return {(k, i) for i in range(int(m.group(4)), int(m.group(5)) + 1)}

class Ins:
    def __init__(s, text):
        s.text = text
        t = text.split(';')[0].strip()
        parts = t.split(None, 1)
        s.op = parts[0]
        rest = parts[1] if len(parts) > 1 else ''
        rest = re.sub(r'\s+op_sel(_hi)?:\[[^\]]*\]', '', rest)
        ops = [o.strip() for o in rest.split(',')] if rest else []
        mods = ''
        if ops:
            last = ops[-1].split()
            if last:
                ops[-1] = last[0]; mods = ' '.join(last[1:])
        s.ops, s.mods = ops, mods
        R = [regs_of(o) for o in ops]
        s.w, s.r = set(), set()
        s.kind = 'other'; s.ab = set(); s.c = set(); s.passes = 0
        s.sdata = set()
        op = s.op
        U = lambda l: set().union(*l) if l else set()
        if op.startswith('v_mfma'):
            s.kind = 'mfma'; s.w = R[0]; s.ab = R[1] | R[2]; s.c = R[3]; s.r = s.ab | s.c
            s.passes = 8 if '32x32' in op else 4
        elif op.startswith('v_smfmac'):
            s.kind = 'mfma'; s.w = R[0]; s.ab = R[1] | R[2] | R[3]; s.c = R[0]; s.r = s.ab | s.c
            s.passes = 8 if '32x32' in op else 4
        elif op.startswith('v_'):
            s.kind = 'valu'
            if op.startswith('v_permlane') or op.startswith('v_swap'):
                s.w = R[0] | R[1]; s.r = R[0] | R[1]
            elif op.startswith('v_cmp'):
                s.w = R[0]; s.r = U(R[1:])
            elif op.startswith(('v_fmac', 'v_writelane', 'v_pk_fmac', 'v_dot2c')) or '_dpp' in op:
                s.w = R[0]; s.r = U(R)
            elif op.startswith(('v_add_co', 'v_sub_co', 'v_addc_co', 'v_subb_co')):
                s.w = R[0] | R[1]; s.r = U(R[2:])
            else:
                s.w = R[0]; s.r = U(R[1:])
        elif op.startswith('ds_'):
            s.kind = 'ds'
            if op.startswith(('ds_read', 'ds_bpermute', 'ds_permute', 'ds_swizzle')):
                s.w = R[0]; s.r = U(R[1:])
            else:
                s.r = U(R)
        elif op.startswith('buffer_'):
            s.kind = 'vm'
            m = re.search(r'offset:(\d+)', mods)
            if m: assert int(m.group(1)) < 4096, text
            if op.startswith('buffer_load'):
                if 'lds' in mods.split():
                    s.r = U(R) | {('s', 'm0')}; s.dma = True
                else:
                    s.w = R[0]; s.r = U(R[1:])
            elif op.startswith('buffer_store'):
                s.r = U(R)
                if 'x3' in op or 'x4' in op: s.sdata = R[0]
            elif op.startswith('buffer_atomic'):
                s.r = U(R)
                if 'sc0' in mods.split(): s.w = R[0]
        elif op.startswith('s_'):
            s.kind = 'salu'
            if op.startswith(('s_load', 's_memtime', 's_memrealtime', 's_buffer_load')):
                s.kind = 'smem'; s.w = R[0]; s.r = U(R[1:])
            elif op.startswith(('s_cmp', 's_waitcnt', 's_barrier', 's_nop', 's_branch', 's_cbranch', 's_sleep', 's_setprio', 's_endpgm', 's_bitcmp')):
                s.r = U(R)
            else:
                s.w = R[0] if R else set(); s.r = U(R[1:])
                if 'saveexec' in op: s.w = s.w | {('s', 'exec')}
        if op.startswith('ds_'):
            m = re.search(r'offset:(\d+)', mods)
            if m: assert int(m.group(1)) < 65536, text
        s.states = int(ops[0]) + 1 if op == 's_nop' else 1
        s.trans = op.replace('_e32', '').replace('_e64', '') in TRANS
        s.lanex = op.startswith('v_permlane')
        s.dpp = '_dpp' in op
        s.rl = op.startswith(('v_readlane', 'v_readfirstlane'))
        s.isdma = getattr(s, 'dma', False)

def vec(rs): return {r for r in rs if r[0] in 'va'}
def sca(rs): return {r for r in rs if r[0] == 's'}

def need(p, c):
    n = 0
    if p.kind == 'valu':
        pv, ps = vec(p.w), sca(p.w)
        if c.kind == 'mfma' and pv & c.r: n = max(n, 2)
        if c.kind == 'valu':
            if (c.lanex or c.dpp) and pv & c.r: n = max(n, 2)
            if c.rl and pv & c.r: n = max(n, 1)
            if p.trans and not c.trans and pv & c.r: n = max(n, 1)
            if p.trans and pv & c.r: n = max(n, 1)
            if ps & c.r:
                n = max(n, 4 if (c.rl or c.op.startswith('v_writelane')) else 2)
            if c.op.startswith('v_cndmask') and len(c.ops) == 3 and ('s', 'vcc') in ps: n = max(n, 2)
        if c.kind == 'vm' and ps & c.r: n = max(n, 5)
        if c.kind in ('salu', 'smem') and ps & c.r and not c.op.startswith('s_cbranch'): n = max(n, 1)
    if p.kind == 'mfma':
        big = {4: 8, 8: 12}[p.passes]
        if c.kind == 'mfma':
            if p.w & c.ab: n = max(n, big)
            if p.w & c.c:
                if not (p.w == c.c and p.op == c.op): n = max(n, big - 2)
            elif p.w & c.w: n = max(n, big - 2)
        elif c.kind in ('valu', 'vm', 'ds'):
            if p.w & (c.r | c.w): n = max(n, big)
            if c.kind == 'valu' and p.c & c.w: n = max(n, {4: 3, 8: 7}[p.passes])
            if c.kind in ('vm', 'ds') and p.c & c.w: n = max(n, {4: 3, 8: 7}[p.passes])
    if p.kind == 'salu' and ('s', 'm0') in p.w and (c.isdma or (c.kind == 'valu' and ('s', 'm0') in c.r)): n = max(n, 1)
    if p.kind == 'vm' and p.sdata and p.sdata & c.w: n = max(n, 2)
    return n

class Asm:
    def __init__(a):
        a.out = []; a.hist = []
        a.vm = []; a.lg = []
        a.smem = False
        a.saved = {}
        a.nlab = 0
        a.count = 0
    def raw(a, text): a.out.append(text)
    def c(a, text): a.out.append('    ; ' + text)
    def _push(a, ins):
        a.out.append('    ' + ins.text); a.hist.append(ins); a.hist = a.hist[-24:]; a.count += 1
    def _waits(a, ins):
        touched = ins.r | ins.w
        nv = None; nl = None
        for i, (d, src) in enumerate(a.vm):
            if d & touched: nv = len(a.vm) - 1 - i
        for i, (d, src) in enumerate(a.lg):
            if d & touched: nl = len(a.lg) - 1 - i
        if nl is not None and a.smem: nl = 0
        if nv is not None or nl is not None: a.wait(vm=nv, lg=nl)
    def wait(a, vm=None, lg=None):
        parts = []
        if vm is not None and vm < len(a.vm):
            n = min(vm, 63); parts.append(f'vmcnt({n})'); a.vm = a.vm[len(a.vm) - n:] if n else []
        if lg is not None and lg < len(a.lg):
            if a.smem: lg = 0
            n = min(lg, 15); parts.append(f'lgkmcnt({n})'); a.lg = a.lg[len(a.lg) - n:] if n else []
            if n == 0: a.smem = False
        if parts: a._push(Ins('s_waitcnt ' + ' '.join(parts)))
    def waitf(a, vm=None, lg=None):
        parts = []
        if vm is not None:
            parts.append(f'vmcnt({vm})'); a.vm = a.vm[len(a.vm) - vm:] if vm and vm < len(a.vm) else ([] if vm == 0 else a.vm)
        if lg is not None:
            parts.append(f'lgkmcnt({lg})'); a.lg = a.lg[len(a.lg) - lg:] if lg and lg < len(a.lg) else ([] if lg == 0 else a.lg)
            if lg == 0: a.smem = False
        a._push(Ins('s_waitcnt ' + ' '.join(parts)))
    def nop(a, n):
        while n > 0:
            k = min(n, 16); a._push(Ins(f's_nop {k-1}')); n -= k
    def __call__(a, text):
        for line in text.split('\n'):
            line = line.strip()
            if not line or line.startswith(';'): continue
            if line.endswith(':'): a.label(line[:-1]); continue
            a.I(line)
    def I(a, text):
        ins = Ins(text)
        if ins.op.startswith(('s_branch', 's_cbranch')): return a.branch(ins)
        a._waits(ins)
        dist = 0; pad = 0
        for p in reversed(a.hist):
            pad = max(pad, need(p, ins) - dist)
            dist += p.states
            if dist > 20: break
        if pad > 0: a.nop(pad)
        a._push(ins)
        if ins.kind == 'vm': a.vm.append((vec(ins.w), text))
        elif ins.kind == 'ds': a.lg.append((vec(ins.w), text))
        elif ins.kind == 'smem': a.lg.append((set(ins.w), text)); a.smem = True
        return ins
    def fence(a):
        dist = 0; pad = 0
        for p in reversed(a.hist):
            n = 0
            if p.kind == 'mfma': n = {4: 8, 8: 12}[p.passes]
            elif p.kind == 'valu':
                n = 2 if vec(p.w) else 0
                if sca(p.w) - {('s', 'vcc')}: n = 5
                elif sca(p.w): n = 2
            elif p.kind == 'vm' and p.sdata: n = 2
            elif p.kind == 'salu' and ('s', 'm0') in p.w: n = 1
            pad = max(pad, n - dist); dist += p.states
        return pad
    def state(a): return ([d for d, _ in a.vm], [d for d, _ in a.lg], a.smem)
    def label(a, name, fresh=False):
        if not fresh:
            pad = a.fence()
            if pad > 0: a.nop(pad)
        if name in a.saved:
            st = a.saved[name]
            if fresh:
                a.vm = [(d, '?') for d in st[0]]; a.lg = [(d, '?') for d in st[1]]; a.smem = st[2]
            else:
                a._merge(name, st)
        else:
            assert not fresh, f'label {name}: fresh but no branch seen'
        a.saved[name] = a.state(); a.saved[name + '!'] = True
        a.out.append(name + ':'); a.hist = []
    def _strip(a, l):
        l = list(l)
        while l and not l[0]: l.pop(0)
        return l
    def _cover(a, head, other):
        h, o = a._strip(head), a._strip(other)
        for k, d in enumerate(reversed(o)):
            if not d: continue
            if not any(d <= hd for hd in list(reversed(h))[:k + 1]): return False
        return True
    def _merge(a, name, st):
        cur = a.state()
        for i in (0, 1):
            if a._cover(cur[i], st[i]): continue
            if a._cover(st[i], cur[i]):
                l = [(d, '?') for d in st[i]]
                if i == 0: a.vm = l
                else: a.lg = l
                continue
            raise AssertionError(f'label {name}: incompatible counter states {cur[i]} vs {st[i]}')
        a.smem = a.smem or st[2]
    def branch(a, ins, nofence=False):
        if isinstance(ins, str): ins = Ins(ins)
        tgt = ins.ops[0]
        if not nofence:
            pad = a.fence() - 1
            if pad > 0: a.nop(pad)
        if tgt in ('L_abort', 'L_end'): pass
        elif tgt + '!' in a.saved:
            st = a.saved[tgt]; cur = a.state()
            for i in (0, 1):
                assert a._cover(st[i], cur[i]), f'back edge to {tgt}: loop-head state {st[i]} does not cover {cur[i]}'
            assert st[2] or not cur[2], f'back edge to {tgt}: smem pending'
        else:
            if tgt in a.saved:
                st = a.saved[tgt]; cur = a.state(); new = []
                for i in (0, 1):
                    if a._cover(st[i], cur[i]): new.append(st[i])
                    elif a._cover(cur[i], st[i]): new.append(cur[i])
                    else: raise AssertionError(f'branch to {tgt}: incompatible states')
                a.saved[tgt] = (new[0], new[1], st[2] or cur[2])
            else:
                a.saved[tgt] = a.state()
        a._push(ins)
    def settle(a, younger):
        keep = list(a.vm); a.waitf(vm=0); a.vm = keep + [(set(), '?')] * younger
    def lab(a, stem):
        a.nlab += 1; return f'L{stem}_{a.nlab}'
    def text(a): return '\n'.join(a.out) + '\n'

def vr(b, n=1): return f'v{b}' if n == 1 else f'v[{b}:{b+n-1}]'
def ar(b, n=1): return f'a{b}' if n == 1 else f'a[{b}:{b+n-1}]'
def sr(b, n=1): return f's{b}' if n == 1 else f's[{b}:{b+n-1}]'
def ur(b, n=1):
    assert (b < 256) == (b + n - 1 < 256)
    return vr(b, n) if b < 256 else ar(b - 256, n)
```

```python
from common import *
from workers import x_stage_setup, x_dma, x_off, XSLOT
from chain import f32, flag_addr, flag_store
import math
LOG2E = math.log2(math.e)

def role_s5a(a):
    a.c('===== S5 stage 1: u = x B^T, diagonal scan, scaled state fragments =====')
    a(f's_sub_u32 s{S_H}, s{S_ROLE}, {R_S5A}')
    srd(a, SA, 'x', 2048 * 1280); srd(a, SB, 'Bre', 640 * 1280); srd(a, SC, 'Bim', 640 * 1280)
    srd(a, 44, 'lre', 1280); srd(a, 48, 'lim', 1280); srd(a, 64, 'ldt', 1280)
    a.waitf(lg=0)
    arrive(a, 8)
    after_chain_start(a, 8)
    VS, VRD, VX, VXN, VST, VFL, VIW, VIR, T = 2, 4, 6, 8, 10, 11, 12, 13, 14
    XF, NXF, ACC, PW, KR, KI, HR, HI, E, C, PK = 24, 8, 56, 72, 88, 89, 90, 91, 92, 100, 108
    LIMG = 3 * XSLOT
    a(f"""
    s_lshl_b32 s41, s{S_H}, 2
    s_add_u32 s41, s41, s{S_WAVE}
    s_lshl_b32 s30, s41, 4
    v_and_b32 v{T}, 15, v{V_LANE}
    v_add_u32 v{T}, s30, v{T}               ; channel
    v_lshrrev_b32 v{T+1}, 4, v{V_LANE}
    v_mul_u32_u24 v{T+2}, 1280, v{T}
    v_lshl_add_u32 v{T+2}, v{T+1}, 4, v{T+2}
    v_lshlrev_b32 v{T+3}, 1, v{T}
    buffer_load_ushort v{T+4}, v{T+3}, s[44:47], 0 offen
    buffer_load_ushort v{T+5}, v{T+3}, s[48:51], 0 offen
    buffer_load_ushort v{T+6}, v{T+3}, s[64:67], 0 offen
    """)
    W = lambda c, ks: 256 + (c * 20 + ks) * 4
    for c in range(2):
        for ks in range(20):
            a(f'buffer_load_dwordx4 {ur(W(c, ks), 4)}, v{T+2}, s[{(SB, SC)[c]}:{(SB, SC)[c]+3}], 0 offen offset:{ks*64}')
    lr, li, dt = T + 4, T + 5, T + 6
    a(f"""
    v_lshlrev_b32 v{lr}, 16, v{lr}
    v_lshlrev_b32 v{li}, 16, v{li}
    v_lshlrev_b32 v{dt}, 16, v{dt}
    v_mul_f32 v{dt}, {f32(LOG2E)}, v{dt}
    v_exp_f32 v{dt}, v{dt}
    v_cvt_pk_bf16_f32 v{dt}, v{dt}, v{dt}
    v_lshlrev_b32 v{dt}, 16, v{dt}
    v_mul_f32 v{T}, v{dt}, v{lr}
    v_mul_f32 v{T+1}, v{dt}, v{li}
    v_mul_f32 v{T}, {f32(LOG2E)}, v{T}
    v_exp_f32 v{T}, v{T}
    v_mul_f32 v{T+1}, 0.15915494, v{T+1}
    v_rndne_f32 v{T+2}, v{T+1}
    v_sub_f32 v{T+1}, v{T+1}, v{T+2}
    v_cos_f32 v{T+2}, v{T+1}
    v_sin_f32 v{T+3}, v{T+1}
    v_mul_f32 v{PW}, v{T}, v{T+2}
    v_mul_f32 v{PW+1}, v{T}, v{T+3}
    v_add_f32 v{T}, -1.0, v{PW}
    v_mul_f32 v{T+2}, v{lr}, v{lr}
    v_fmac_f32 v{T+2}, v{li}, v{li}
    v_rcp_f32 v{T+2}, v{T+2}
    v_mul_f32 v{KR}, v{T}, v{lr}
    v_fmac_f32 v{KR}, v{PW+1}, v{li}
    v_mul_f32 v{KI}, v{PW+1}, v{lr}
    v_fma_f32 v{KI}, -v{T}, v{li}, v{KI}
    v_add_f32 v{T+2}, v{T+2}, v{T+2}
    v_mul_f32 v{KR}, v{KR}, v{T+2}
    v_mul_f32 v{KI}, v{KI}, v{T+2}
    v_mov_b32 v{HR}, 0
    v_mov_b32 v{HI}, 0
    """)
    for k in range(1, 8):
        p, q = PW + 2*k, PW + 2*k - 2
        a(f'v_mul_f32 v{p}, v{q}, v{PW}'); a(f'v_fma_f32 v{p}, -v{q+1}, v{PW+1}, v{p}')
        a(f'v_mul_f32 v{p+1}, v{q}, v{PW+1}'); a(f'v_fmac_f32 v{p+1}, v{q+1}, v{PW}')
    x_stage_setup(a, VS, VRD, perm=True)
    a(f"""
    v_mov_b32 v{VX}, v{VRD}
    v_mov_b32 v{VX+1}, v{VRD+1}
    v_add_u32 v{VXN}, {XSLOT}, v{VRD}
    v_add_u32 v{VXN+1}, {XSLOT}, v{VRD+1}
    s_lshl_b32 s30, s41, 11
    v_lshl_add_u32 v{VST}, v{V_LANE}, 4, s30
    v_and_b32 v{T}, 15, v{V_LANE}
    v_lshrrev_b32 v{T+1}, 4, v{V_LANE}
    v_cmp_le_u32 s[68:69], 1, v{T+1}
    v_cmp_le_u32 s[70:71], 2, v{T+1}
    v_cmp_le_u32 s[72:73], 3, v{T+1}
    s_lshl_b32 s30, s{S_WAVE}, 11
    s_add_u32 s30, s30, {LIMG}
    v_lshl_add_u32 v{VIW}, v{T}, 6, s30
    v_lshl_add_u32 v{VIW}, v{T+1}, 4, v{VIW}
    v_lshl_add_u32 v{VIR}, v{T+1}, 9, s30
    v_bfe_u32 v{T}, v{V_LANE}, 2, 2
    v_lshl_add_u32 v{VIR}, v{T}, 6, v{VIR}
    v_and_b32 v{T}, 3, v{V_LANE}
    v_lshl_add_u32 v{VIR}, v{T}, 3, v{VIR}
    s_mov_b32 s50, {HT_BASE}
    s_mov_b32 s52, 0
    s_mov_b32 s53, 0
    s_mov_b32 s54, s40
    """)
    flag_addr(a, VFL)
    for j in range(10): [a(x) for x in x_dma(a, VS, j, 54, 53)]
    a(f's_mov_b32 s53, {XSLOT}'); a(f's_add_u32 s54, s40, {XSLOT}')
    for j in range(10): [a(x) for x in x_dma(a, VS, j, 54, 53)]
    a(f's_mov_b32 s53, {2*XSLOT}'); a(f's_add_u32 s54, s40, {2*XSLOT}'); a(f's_mov_b32 s55, {2*XSLOT}')
    a.waitf(vm=10); a('s_barrier')
    PF = 6
    def rd(g):
        tt, ks = divmod(g % 40, 20)
        v = (VX if g < 40 else VXN) + (ks & 1)
        return f'ds_read_b128 {vr(XF + 4*(g % NXF), 4)}, v{v} offset:{x_off(tt, ks)}'
    for g in range(PF): a(rd(g))
    a.waitf(lg=0)
    a.label('L_sa_loop')
    main = []; side = {}
    def put(g, l): side.setdefault(g, []).extend(l)
    U = lambda c, tau: ACC + 8*c + tau
    for g in range(40):
        tt, ks = divmod(g, 20)
        mf = []
        for c in range(2):
            d = vr(U(c, 4*tt), 4)
            mf.append(f'v_mfma_f32_16x16x32_bf16 {d}, {vr(XF + 4*(g % NXF), 4)}, {ur(W(c, ks), 4)}, {d if ks else 0}')
        main.append([mf[0], rd(g + PF), mf[1]])
    put(0, ['s_barrier'])
    for j in range(10): put(1 + 3*j, x_dma(a, VS, j, 54, 53))
    put(32, [lambda: a.waitf(vm=10), 's_barrier'])
    put(33, [lambda: flag_store(a, VFL, T, 's52')])
    put(36, [f's_add_u32 s53, s53, {XSLOT}', 's_add_u32 s52, s52, 1'])
    put(37, [f'v_mov_b32 v{VX}, v{VXN}', f'v_mov_b32 v{VX+1}, v{VXN+1}'])
    put(38, [f's_add_u32 s56, s55, {XSLOT}', f's_cmp_eq_u32 s56, {3*XSLOT}', 's_cselect_b32 s56, 0, s56', 's_add_u32 s54, s56, s40'])
    def cfma(dr, di, pr, pi, sr_, si):
        return [f'v_fmac_f32 v{dr}, v{pr}, v{sr_}', f'v_fmac_f32 v{di}, v{pr}, v{si}',
                f'v_fma_f32 v{dr}, -v{pi}, v{si}, v{dr}', f'v_fmac_f32 v{di}, v{pi}, v{sr_}']
    for tau in range(1, 4): put(24 + 2*tau, cfma(U(0, tau), U(1, tau), PW, PW + 1, U(0, tau-1), U(1, tau-1)))
    interleave(a, main, side)
    a(f'v_add_u32 v{VXN}, s55, v{VRD}'); a(f'v_add_u32 v{VXN+1}, s55, v{VRD+1}'); a('s_mov_b32 s55, s56')
    for tau in range(4, 8): [a(x) for x in cfma(U(0, tau), U(1, tau), PW, PW + 1, U(0, tau-1), U(1, tau-1))]
    for c in range(2):
        e = E + 4*c
        a(f'v_mov_b32 v{e}, v{U(c,7)}'); a(f'v_mov_b32 v{e+1}, v{U(c,7)}')
    for c in range(2): a(f'v_permlane16_swap_b32 v{E+4*c}, v{E+4*c+1}')
    for c in range(2):
        e = E + 4*c
        a(f'v_mov_b32 v{e+2}, v{e}'); a(f'v_mov_b32 v{e+3}, v{e+1}')
    for c in range(2):
        e = E + 4*c
        a(f'v_permlane32_swap_b32 v{e}, v{e+2}'); a(f'v_permlane32_swap_b32 v{e+1}, v{e+3}')
    P8 = PW + 14
    prev = (HR, HI)
    a(f'v_mov_b32 v{C}, v{HR}'); a(f'v_mov_b32 v{C+1}, v{HI}')
    for g in range(4):
        for x in cfma(E + g, E + 4 + g, P8, P8 + 1, prev[0], prev[1]): a(x)
        prev = (E + g, E + 4 + g)
        if g < 3:
            a(f'v_cndmask_b32 v{C}, v{C}, v{E+g}, s[{68+2*g}:{69+2*g}]'); a(f'v_cndmask_b32 v{C+1}, v{C+1}, v{E+4+g}, s[{68+2*g}:{69+2*g}]')
    a(f'v_mov_b32 v{HR}, v{E+3}'); a(f'v_mov_b32 v{HI}, v{E+7}')
    for tau in range(8): [a(x) for x in cfma(U(0, tau), U(1, tau), PW + 2*tau, PW + 2*tau + 1, C, C + 1)]
    for tau in range(8):
        r, i, t = U(0, tau), U(1, tau), E + (tau & 3)
        a(f'v_mul_f32 v{t}, v{KR}, v{r}'); a(f'v_mul_f32 v{r}, v{KI}, v{r}')
        a(f'v_fma_f32 v{t}, -v{KI}, v{i}, v{t}'); a(f'v_fma_f32 v{i}, -v{KR}, v{i}, -v{r}')
        if tau & 1:
            a(f'v_cvt_pk_bf16_f32 v{PK + tau//2}, v{E + ((tau-1) & 3)}, v{t}')
            a(f'v_cvt_pk_bf16_f32 v{PK + 4 + tau//2}, v{i-1}, v{i}')
    a(f'ds_write_b128 v{VIW}, {vr(PK,4)}'); a(f'ds_write_b128 v{VIW}, {vr(PK+4,4)} offset:1024')
    for tt in range(2):
        for i in range(2): a(f'ds_read_b64_tr_b16 {vr(PK + 8 + 4*tt + 2*i, 2)}, v{VIR} offset:{tt*32 + i*256}')
    for tt in range(2):
        a(f'buffer_store_dwordx4 {vr(PK + 8 + 4*tt, 4)}, v{VST}, s[{WS}:{WS+3}], s50 offen offset:{tt*1024} sc1')
    a(f's_add_u32 s50, s50, {40*2048}')
    a('s_cmp_lt_u32 s52, 64')
    a('s_cbranch_scc1 L_sa_loop')
    a.waitf(vm=0, lg=0)
    flag_store(a, VFL, T, 's52')
    a('s_barrier'); a('s_branch L_xc')

def role_s5b(a):
    a.c('===== S5 stage 2: y = h C^T for 64 output columns =====')
    a(f's_sub_u32 s{S_H}, s{S_ROLE}, {R_S5B}')
    srd(a, SB, 'Cre', 640 * 1280); srd(a, SC, 'Cim', 640 * 1280)
    a.waitf(lg=0)
    arrive(a, 8)
    after_chain_start(a, 8)
    VL, VW, VR_, VST, VFL, VPF, T = 2, 8, 9, 10, 11, 12, 16
    FLG, ACC, HB = 20, 24, 64
    W = lambda j, k: 256 + (j * 10 + k) * 4
    a(f"""
    s_lshl_b32 s30, s{S_H}, 6
    v_and_b32 v{T}, 15, v{V_LANE}
    v_add_u32 v{T}, s30, v{T}
    v_mul_u32_u24 v{T}, 1280, v{T}
    v_bfe_u32 v{T+1}, v{V_LANE}, 4, 1
    v_lshl_add_u32 v{T}, v{T+1}, 4, v{T}
    s_mul_i32 s30, s{S_WAVE}, 320
    v_add_u32 v{T}, s30, v{T}
    """)
    for half, sd in ((0, SB), (1, SC)):
        a('s_mov_b64 exec, 0xffffffff' if half == 0 else 's_mov_b32 exec_lo, 0')
        if half: a('s_mov_b32 exec_hi, -1'); a.waitf(vm=0)
        for j in range(4):
            a(f's_mov_b32 s34, {j*16*1280}')
            for k in range(10): a(f'buffer_load_dwordx4 {ur(W(j, k), 4)}, v{T}, s[{sd}:{sd+3}], s34 offen offset:{k*32}')
    a('s_mov_b64 exec, -1')
    a(f's_mul_i32 s30, s{S_WAVE}, 20480')
    a(f'v_lshl_add_u32 v{VL}, v{V_LANE}, 4, s30')
    for i in range(1, 5): a(f'v_add_u32 v{VL+i}, {4096*i}, v{VL}')
    a(f"""
    s_lshl_b32 s30, s{S_WAVE}, 13
    v_lshl_add_u32 v{VW}, v{V_LANE}, 4, s30
    s_lshl_b32 s30, s{S_WAVE}, 11
    v_lshl_add_u32 v{VR_}, v{V_LANE}, 4, s30
    s_lshr_b32 s30, s{S_WAVE}, 1
    s_mul_i32 s30, s30, 40
    s_and_b32 s31, s{S_WAVE}, 1
    s_lshl_b32 s31, s31, 1
    s_add_u32 s30, s30, s31
    s_lshl_b32 s31, s{S_H}, 2
    s_add_u32 s30, s30, s31
    s_lshl_b32 s30, s30, 10
    v_lshl_add_u32 v{VST}, v{V_LANE}, 4, s30
    v_min_u32 v{T}, 9, v{V_LANE}
    v_lshlrev_b32 v{VPF}, 7, v{T}
    v_add_u32 v{VPF}, {flag_off(R_S5A)}, v{VPF}
    s_mov_b32 s50, {HT_BASE}
    s_mov_b32 s51, {BB_BASE}
    s_mov_b32 s52, 0
    s_mov_b32 s53, 0
    """)
    flag_addr(a, VFL)
    a.waitf(vm=0)
    wait_all_arrived(a, T, 1)
    def need(sneed):
        lp = a.lab('sbp')
        a('s_mov_b32 s31, 0'); a(f's_min_u32 s30, s{sneed}, 63')
        keep = list(a.vm)
        a.label(lp)
        a(f"""
        buffer_load_dwordx4 {vr(FLG,4)}, v{VPF}, s[{WS}:{WS+3}], 0 offen sc1
        s_add_u32 s31, s31, 1
        s_cmp_gt_u32 s31, {SPIN_MAX}
        s_cbranch_scc1 L_abort
        v_min_u32 v{FLG}, v{FLG}, v{FLG+1}
        v_min3_u32 v{FLG}, v{FLG}, v{FLG+2}, v{FLG+3}
        v_cmp_ge_u32 vcc, s30, v{FLG}
        s_cbranch_vccnz {lp}
        """)
    def loads(buf):
        return [f'buffer_load_dwordx4 {vr(HB + 80*buf + 4*f, 4)}, v{VL + f // 4}, s[{WS}:{WS+3}], s50 offen offset:{(f % 4)*1024} sc1' for f in range(20)]
    need(52)
    for x in loads(0): a(x)
    a(f's_add_u32 s50, s50, {40*2048}')
    a.label('L_sb_loop')
    for buf in range(2):
        a('s_add_u32 s58, s52, 1')
        need(58)
        flag_store(a, VFL, T, 's52')
        a('s_cmp_lt_u32 s58, 64'); a(f's_cselect_b32 s50, s50, {OOB}')
        ld = loads(1 - buf)
        n = 0
        for k in range(10):
            for tt in range(2):
                for j in range(4):
                    c = vr(ACC + 16*tt + 4*j, 4)
                    a(f'v_mfma_f32_16x16x32_bf16 {c}, {ur(W(j, k), 4)}, {vr(HB + 80*buf + 4*(2*k+tt), 4)}, {c if k else 0}')
                a(ld[n]); n += 1
        a(f'v_add_u32 v{T}, s53, v{VW}'); a(f'v_add_u32 v{T+1}, s53, v{VR_}')
        for t in range(8): a(f'ds_write_b128 v{T}, {vr(ACC + 4*t, 4)} offset:{t*1024}')
        a.waitf(lg=0); a('s_barrier')
        for t in range(2):
            for w in range(4): a(f'ds_read_b128 {vr(ACC + 16*t + 4*w, 4)}, v{T+1} offset:{w*8192 + t*1024}')
        for t in range(2):
            b = ACC + 16*t
            for i in range(4): a(f'v_add_f32 v{b+i}, v{b+i}, v{b+4+i}')
            for i in range(4): a(f'v_add_f32 v{b+8+i}, v{b+8+i}, v{b+12+i}')
            for i in range(4): a(f'v_add_f32 v{b+i}, v{b+i}, v{b+8+i}')
            a(f'buffer_store_dwordx4 {vr(b,4)}, v{VST}, s[{WS}:{WS+3}], s51 offen offset:{t*1024} sc1')
        a(f"""
        s_xor_b32 s53, s53, 32768
        s_add_u32 s50, s50, {40*2048}
        s_add_u32 s51, s51, {80*1024}
        s_add_u32 s52, s52, 1
        """)
    a('s_cmp_lt_u32 s52, 64')
    a('s_cbranch_scc1 L_sb_loop')
    a.waitf(vm=0)
    flag_store(a, VFL, T, 's52')
    a('s_barrier'); a('s_branch L_xc')

def role_gate(a):
    a.c('===== gate: g = sigmoid(sum(x * gate_w)) for 512 tokens =====')
    srd(a, SA, 'x', 2048 * 1280); srd(a, SB, 'gw', 1280)
    a.waitf(lg=0)
    after_chain_start(a, 8)
    VX, VST, VFL, T, XB, GW, AC = 2, 3, 4, 8, 16, 40, 80
    a(f"""
    v_and_b32 v{T}, 15, v{V_LANE}
    v_lshlrev_b32 v{T}, 4, v{T}
    v_lshrrev_b32 v{T+1}, 4, v{V_LANE}
    s_sub_u32 s30, s{S_ROLE}, {R_SP}
    s_lshl_b32 s30, s30, 2
    s_add_u32 s30, s30, s{S_WAVE}
    s_lshl_b32 s30, s30, 7
    v_add_u32 v{T+1}, s30, v{T+1}
    v_mul_u32_u24 v{VX}, 1280, v{T+1}
    v_add_u32 v{VX}, v{VX}, v{T}
    v_lshlrev_b32 v{VST}, 3, v{T+1}
    s_mov_b32 s52, 0
    s_mov_b32 s53, {G_BASE}
    s_mov_b32 s44, 0xffff0000
    """)
    for p in range(5): a(f'buffer_load_dwordx4 {vr(XB + 4*p, 4)}, v{T}, s[{SB}:{SB+3}], 0 offen offset:{p*256}')
    for i in range(20):
        a(f'v_lshlrev_b32 v{GW+2*i}, 16, v{XB+i}'); a(f'v_and_b32 v{GW+2*i+1}, s44, v{XB+i}')
    flag_addr(a, VFL)
    a.label('L_g_loop')
    for p in range(5): a(f'buffer_load_dwordx4 {vr(XB + 4*p, 4)}, v{VX}, s[{SA}:{SA+3}], s52 offen offset:{p*256}')
    a(f'v_mov_b32 v{AC}, 0'); a(f'v_mov_b32 v{AC+1}, 0')
    for i in range(20):
        a(f"""
        v_lshlrev_b32 v{T}, 16, v{XB+i}
        v_and_b32 v{T+1}, s44, v{XB+i}
        v_mul_f32 v{T}, v{T}, v{GW+2*i}
        v_mul_f32 v{T+1}, v{T+1}, v{GW+2*i+1}
        v_cvt_pk_bf16_f32 v{T}, v{T}, v{T+1}
        v_and_b32 v{T+1}, s44, v{T}
        v_lshlrev_b32 v{T}, 16, v{T}
        v_add_f32 v{AC+1}, v{AC+1}, v{T+1}
        v_add_f32 v{AC}, v{AC}, v{T}
        """)
    a(f'v_add_f32 v{AC}, v{AC}, v{AC+1}')
    for r in (8, 4, 2, 1): a(f'v_add_f32_dpp v{AC}, v{AC}, v{AC} row_ror:{r} row_mask:0xf bank_mask:0xf')
    a(f"""
    v_cvt_pk_bf16_f32 v{AC}, v{AC}, v{AC}
    v_lshlrev_b32 v{AC}, 16, v{AC}
    v_mul_f32 v{AC}, {f32(-LOG2E)}, v{AC}
    v_exp_f32 v{AC}, v{AC}
    v_add_f32 v{AC}, 1.0, v{AC}
    v_rcp_f32 v{AC}, v{AC}
    v_cvt_pk_bf16_f32 v{AC}, v{AC}, v{AC}
    v_lshlrev_b32 v{AC}, 16, v{AC}
    v_sub_f32 v{AC+1}, 1.0, v{AC}
    v_cvt_pk_bf16_f32 v{AC+1}, v{AC+1}, v{AC+1}
    v_lshlrev_b32 v{AC+1}, 16, v{AC+1}
    s_mov_b32 exec_lo, 0x00010001
    s_mov_b32 exec_hi, 0x00010001
    buffer_store_dwordx2 {vr(AC,2)}, v{VST}, s[{WS}:{WS+3}], s53 offen sc1
    s_mov_b64 exec, -1
    s_add_u32 s52, s52, {4*1280}
    s_add_u32 s53, s53, 32
    s_cmp_lt_u32 s52, {128*1280}
    s_cbranch_scc1 L_g_loop
    """)
    a.waitf(vm=0)
    flag_store(a, VFL, T, 64)
```

```python
from common import *

XSLOT = 40960
def x_stage_setup(a, vsrc, vrd, perm=False):
    a(f'''
    v_lshrrev_b32 v{vsrc}, 3, v{V_LANE}
    v_and_b32 v{vrd}, 7, v{V_LANE}
    v_xor_b32 v{vrd}, v{vrd}, v{vsrc}
    ''')
    if perm:
        a(f'''
        v_and_b32 v{vrd+1}, 4, v{vsrc}
        v_add_u32 v{vsrc}, v{vsrc}, v{vrd+1}
        s_and_b32 s30, s{S_WAVE}, 1
        s_lshl_b32 s30, s30, 4
        s_lshr_b32 s31, s{S_WAVE}, 1
        s_lshl_b32 s31, s31, 2
        s_add_u32 s30, s30, s31
        ''')
    else:
        a(f's_lshl_b32 s30, s{S_WAVE}, 3')
    a(f'''
    v_add_u32 v{vsrc}, s30, v{vsrc}
    v_mul_u32_u24 v{vsrc}, 1280, v{vsrc}
    v_lshl_add_u32 v{vsrc}, v{vrd}, 4, v{vsrc}
    s_mul_i32 s40, s{S_WAVE}, 10240
    v_and_b32 v{vrd}, 7, v{V_LANE}
    v_lshrrev_b32 v{vrd+1}, 4, v{V_LANE}
    v_xor_b32 v{vrd+1}, v{vrd+1}, v{vrd}
    v_lshlrev_b32 v{vrd+1}, 4, v{vrd+1}
    v_lshl_add_u32 v{vrd}, v{vrd}, 7, v{vrd+1}
    v_bfe_u32 v{vrd+1}, v{V_LANE}, 3, 1
    v_mul_u32_u24 v{vrd+1}, 10240, v{vrd+1}
    v_add_u32 v{vrd}, v{vrd}, v{vrd+1}
    v_xor_b32 v{vrd+1}, 64, v{vrd}
    ''')
def x_off(tt, ks): return tt * 20480 + (ks >> 1) * 1024

def x_dma(a, vsrc, j, s_slot, s_seg):
    return [f's_add_u32 m0, s{s_slot}, {j*1024}', f's_add_u32 s34, s{s_seg}, {j*128}',
            f'buffer_load_dwordx4 v{vsrc}, s[{SA}:{SA+3}], s34 offen lds']

def role_proj(a):
    a.c('===== projection worker: one 192-column head slice of Wq / Wk / Wv stationary in registers =====')
    a(f's_sub_u32 s30, s{S_ROLE}, {R_PJ}')
    a(f's_and_b32 s{S_H}, s30, 31')
    a(f's_lshr_b32 s{S_P2}, s30, 5')
    a(f's_load_dwordx2 s[44:45], s[0:1], {KA["Wq"]}')
    a(f's_load_dwordx2 s[46:47], s[0:1], {KA["Wk"]}')
    a(f's_load_dwordx2 s[48:49], s[0:1], {KA["Wv"]}')
    srd(a, SA, 'x', 2048 * 1280)
    a.waitf(lg=0)
    a(f'''
    s_cmp_eq_u32 s{S_P2}, 1
    s_cselect_b32 s{SB}, s46, s44
    s_cselect_b32 s{SB+1}, s47, s45
    s_cmp_eq_u32 s{S_P2}, 2
    s_cselect_b32 s{SB}, s48, s{SB}
    s_cselect_b32 s{SB+1}, s49, s{SB+1}
    s_mov_b32 s{SB+2}, {640*12288}
    s_mov_b32 s{SB+3}, 0x20000
    s_mul_i32 s41, s{S_H}, 384
    ''')
    stamp_init(a, 250, 2); stamp(a, 251, 0)
    arrive(a, 8)
    stamp(a, 251, 1)
    W = lambda j, ks: 256 + (j * 20 + ks) * 4
    load_weights(a, [WMat(SB, 12288, 24, 20, 4, True, etile_sreg, W, 3)], 8, sbase=[41])
    stamp(a, 251, 2); stamp(a, 251, 8, cyc=True)
    VS, VRD, VX, VXN, VST4, VST3, VFL, VFD = 2, 4, 6, 8, 10, 11, 12, 13
    XF, NXF, ACC, PK, PK3 = 16, 8, 48, 72, 76
    x_stage_setup(a, VS, VRD)
    a(f'''
    v_mov_b32 v{VX}, v{VRD}
    v_mov_b32 v{VX+1}, v{VRD+1}
    v_add_u32 v{VXN}, {XSLOT}, v{VRD}
    v_add_u32 v{VXN+1}, {XSLOT}, v{VRD+1}
    s_lshl_b32 s30, s{S_WAVE}, 10
    v_lshl_add_u32 v{VST4}, v{V_LANE}, 4, s30
    v_add_u32 v{VST3}, 8192, v{VST4}
    s_lshl_b32 s30, s{S_ROLE}, 7
    s_lshl_b32 s31, s{S_WAVE}, 2
    s_add_u32 s30, s30, s31
    s_add_u32 s30, s30, {FL_BASE}
    v_mov_b32 v{VFL}, s30
    s_mul_i32 s50, s{S_P2}, {QKV_SZ}
    s_mul_i32 s30, s{S_H}, 12288
    s_add_u32 s50, s50, s30
    s_add_u32 s50, s50, {QKV_BASE}
    s_mov_b32 s51, {OOB}
    s_mov_b32 s52, 0                    ; s
    s_mov_b32 s53, 0
    s_mov_b32 s54, s40
    ''')
    for j in range(10): [a(x) for x in x_dma(a, VS, j, 54, 53)]
    a(f's_mov_b32 s53, {XSLOT}'); a(f's_add_u32 s54, s40, {XSLOT}')
    for j in range(10): [a(x) for x in x_dma(a, VS, j, 54, 53)]
    a(f's_mov_b32 s53, {2*XSLOT}'); a(f's_add_u32 s54, s40, {2*XSLOT}')
    a(f's_mov_b32 s55, {2*XSLOT}')
    a.waitf(vm=10); a('s_barrier')
    PF = 6
    def rd(g):
        tt, ks = divmod(g % 40, 20)
        v = (VX if g < 40 else VXN) + (ks & 1)
        return f'ds_read_b128 {vr(XF + 4*(g % NXF), 4)}, v{v} offset:{x_off(tt, ks)}'
    for g in range(PF): a(rd(g))
    a.wait(lg=PF - 1)
    def epi(tt, sreg):
        c = ACC + 12*tt
        l = [f'v_cvt_pk_bf16_f32 v{PK+i}, v{c+2*i}, v{c+2*i+1}' for i in range(4)]
        l += [f'v_cvt_pk_bf16_f32 v{PK3+2*tt+i}, v{c+8+2*i}, v{c+8+2*i+1}' for i in range(2)]
        st = [f's_add_u32 s35, s{sreg}, {4096*tt}', f'buffer_store_dwordx4 {vr(PK,4)}, v{VST4}, s[{WS}:{WS+3}], s35 offen sc1']
        if tt: st.append(f'buffer_store_dwordx4 {vr(PK3,4)}, v{VST3}, s[{WS}:{WS+3}], s{sreg} offen sc1')
        return l, st
    a.label('L_pj_loop')
    if not a.opt.get('nolst'): stamp(a, 250, 's52')
    main = []; side = {}
    for g in range(40):
        tt, ks = divmod(g, 20)
        mf = []
        for j in range(3):
            c = vr(ACC + 12*tt + 4*j, 4)
            mf.append(f'v_mfma_f32_16x16x32_bf16 {c}, {ur(W(j, ks), 4)}, {vr(XF + 4*(g % NXF), 4)}, {c if ks else 0}')
        main.append([mf[0], rd(g + PF), mf[1], lambda: a.wait(lg=PF - 1), mf[2]])
    def put(g, l): side.setdefault(g, []).extend(l)
    put(0, ['s_barrier'])
    cv, st = epi(1, 51)
    put(2, cv[:2]); put(3, cv[2:4]); put(5, cv[4:]); put(6, st[:2]); put(8, st[2:])
    for j in range(10): put(1 + 3*j, [] if a.opt.get('nodma') else x_dma(a, VS, j, 54, 53))
    cv, st = epi(0, 50)
    put(23, cv[:2]); put(24, cv[2:4]); put(26, cv[4:]); put(27, st)
    put(32, [lambda: a.waitf(vm=8), 's_barrier', f'v_mov_b32 v{VFD}, s52', 's_mov_b64 exec, 1',
             f'buffer_store_dword v{VFD}, v{VFL}, s[{WS}:{WS+3}], 0 offen sc1', 's_mov_b64 exec, -1'])
    put(35, [f's_mov_b32 s51, s50', f's_add_u32 s50, s50, {32*12288}'])
    put(36, [f's_add_u32 s53, s53, {XSLOT}', 's_add_u32 s52, s52, 1'])
    put(37, [f'v_mov_b32 v{VX}, v{VXN}', f'v_mov_b32 v{VX+1}, v{VXN+1}'])
    put(38, [f's_add_u32 s56, s55, {XSLOT}', f's_cmp_eq_u32 s56, {3*XSLOT}', 's_cselect_b32 s56, 0, s56', 's_add_u32 s54, s56, s40'])
    interleave(a, main, side)
    a(f'''
    v_add_u32 v{VXN}, s55, v{VRD}
    v_add_u32 v{VXN+1}, s55, v{VRD+1}
    s_mov_b32 s55, s56
    s_cmp_lt_u32 s52, 64
    ''')
    a.branch('s_cbranch_scc1 L_pj_loop', nofence=True)
    cv, st = epi(1, 51)
    for x in cv + st: a(x)
    a.waitf(vm=0, lg=0)
    stamp(a, 251, 3); stamp(a, 251, 9, cyc=True); stamp_dump(a, 250, 2, 14)
    a(f'''
    v_mov_b32 v{VFD}, s52
    s_mov_b64 exec, 1
    buffer_store_dword v{VFD}, v{VFL}, s[{WS}:{WS+3}], 0 offen sc1
    s_mov_b64 exec, -1
    s_barrier
    s_branch L_xc
    ''')

def role_vo(a):
    a.c('===== VO worker: Wo[h] stationary, VO = V[h] Wo[h] per segment =====')
    a(f's_sub_u32 s{S_H}, s{S_ROLE}, {R_VO}')
    srd(a, SB, 'Wo', 32 * 245760)
    a.waitf(lg=0)
    a(f's_mul_i32 s41, s{S_H}, 245760')
    stamp_init(a, 250, 3); stamp(a, 251, 0)
    arrive(a, 8)
    stamp(a, 251, 1)
    W = lambda j, ks: 256 + (j * 6 + ks) * 4
    load_weights(a, [WMat(SB, 1280, 80, 6, 1, False, dtile_sreg, W, 10)], 8, sbase=[41])
    stamp(a, 251, 2)
    wait_all_arrived(a, 8)
    stamp(a, 251, 4)
    VL, VL2, VL3, VST, VFL, VFD, VZ = 2, 3, 4, 5, 6, 7, 8
    FLG, ACC, PK, VB = 12, 16, 32, 48
    a(f'''
    v_lshlrev_b32 v{VL}, 4, v{V_LANE}
    v_add_u32 v{VL2}, 4096, v{VL}
    v_add_u32 v{VL3}, 8192, v{VL}
    s_mul_i32 s30, s{S_WAVE}, {10*32768}
    s_lshl_b32 s31, s{S_H}, 10
    s_add_u32 s30, s30, s31
    v_add_u32 v{VST}, s30, v{VL}
    s_lshl_b32 s30, s{S_ROLE}, 7
    s_lshl_b32 s31, s{S_WAVE}, 2
    s_add_u32 s30, s30, s31
    s_add_u32 s30, s30, {FL_BASE}
    v_mov_b32 v{VFL}, s30
    v_mov_b32 v{VZ}, 0
    s_lshl_b32 s56, s{S_H}, 7
    s_add_u32 s56, s56, {flag_off(R_PJ + 64)}
    s_mul_i32 s50, s{S_H}, 12288
    s_add_u32 s50, s50, {QKV_BASE + 2*QKV_SZ}
    s_mov_b32 s51, {VO_BASE}
    s_mov_b32 s52, 0                              ; s
    s_mov_b32 s57, 0
    ''')
    fl = f'buffer_load_dwordx4 {vr(FLG,4)}, v{VZ}, s[{WS}:{WS+3}], s56 offen sc1'
    def need_v(sneed):
        ok = a.lab('vok'); lp = a.lab('vpl')
        chk = f'''
        v_min_u32 v{FLG}, v{FLG}, v{FLG+1}
        v_min3_u32 v{FLG}, v{FLG}, v{FLG+2}, v{FLG+3}
        v_readfirstlane_b32 s57, v{FLG}
        s_min_u32 s30, s{sneed}, 63
        s_cmp_gt_u32 s57, s30
        s_cbranch_scc1 {ok}
        '''
        a('s_mov_b32 s31, 0')
        a(chk)
        a.label(lp)
        a(f'''
        {fl}
        s_add_u32 s31, s31, 1
        s_cmp_gt_u32 s31, {SPIN_MAX}
        s_cbranch_scc1 L_abort
        {chk}
        s_branch {lp}
        ''')
        a.label(ok, fresh=True)
    def loads(buf):
        l = []
        for f in range(12):
            l.append(f'buffer_load_dwordx4 {vr(VB + 48*buf + 4*f, 4)}, v{(VL, VL2, VL3)[f // 4]}, s[{WS}:{WS+3}], s50 offen offset:{(f % 4) * 1024} sc1')
        return l
    a(fl); need_v(52)
    for x in loads(0): a(x)
    a(f's_add_u32 s50, s50, {32*12288}')
    a(fl)
    a.settle(3)
    a.label('L_vo_loop')
    for buf in range(2):
        a('s_add_u32 s58, s52, 1')
        stamp(a, 252, 's52')
        need_v(58)
        stamp(a, 250, 's52')
        a(f's_cmp_lt_u32 s58, 64'); a(f's_cselect_b32 s50, s50, {OOB}')
        ld = loads(1 - buf)
        for k in range(2):
            for i in range(2): a(f'v_swap_b32 v{VB+48*buf+32+8*k+2+i}, v{VB+48*buf+32+8*k+4+i}')
        main = []; side = {}
        for dt in range(10):
            for ks in range(6):
                grp = []
                for tt in range(2):
                    c = vr(ACC + 8*(dt & 1) + 4*tt, 4)
                    grp.append(f'v_mfma_f32_16x16x32_bf16 {c}, {vr(VB + 48*buf + (16*tt + 4*ks if ks < 4 else 32 + 8*(ks-4) + 4*tt), 4)}, {ur(W(dt, ks), 4)}, {c if ks else 0}')
                main.append(grp)
        def epi(dt):
            c = ACC + 8*(dt & 1); p = PK + 4*(dt & 1)
            return ([f'v_cvt_pk_bf16_f32 v{p+i}, v{c+2*i}, v{c+2*i+1}' for i in range(4)],
                    [f's_add_u32 s34, s51, {dt*32768}', f'buffer_store_dwordx4 {vr(p,4)}, v{VST}, s[{WS}:{WS+3}], s34 offen sc1'])
        for dt in range(9):
            cv, st = epi(dt)
            side.setdefault(6*dt + 9, []).extend(cv[:2]); side.setdefault(6*dt + 10, []).extend(cv[2:]); side.setdefault(6*dt + 11, []).extend(st)
        for f in range(12): side.setdefault(6 + 2*f, []).append(ld[f])
        def flag():
            n = 12 + 5
            a.waitf(vm=n)
            a(f'v_mov_b32 v{VFD}, s52'); a('s_mov_b64 exec, 1')
            a(f'buffer_store_dword v{VFD}, v{VFL}, s[{WS}:{WS+3}], 0 offen sc1'); a('s_mov_b64 exec, -1')
        side.setdefault(38, []).append(flag)
        side.setdefault(50, []).append(fl)
        interleave(a, main, side)
        cv, st = epi(9)
        for x in cv + st: a(x)
        a(f'''
        s_add_u32 s50, s50, {32*12288}
        s_add_u32 s51, s51, {40*32768}
        s_add_u32 s52, s52, 1
        ''')
    a('s_cmp_lt_u32 s52, 64')
    a('s_cbranch_scc1 L_vo_loop')
    a.waitf(vm=0)
    stamp(a, 251, 3); stamp_dump(a, 250, 3, 10)
    a(f'''
    v_mov_b32 v{VFD}, s52
    s_mov_b64 exec, 1
    buffer_store_dword v{VFD}, v{VFL}, s[{WS}:{WS+3}], 0 offen sc1
    s_mov_b64 exec, -1
    s_barrier
    s_branch L_xc
    ''')
```

```python
from common import *
from chain import step_base, get_parity, S_BASE, S_PAR

def role_xc(a):
    a.c('===== XC: segment rows out = gate-mix(P [Z; VO], S5) for 128 columns; tasks taken from a counter =====')
    OUT, XS, DS = SA, SB, SC
    srd(a, OUT, 'out', 2048 * 640 * 4); srd(a, XS, 'x', 2048 * 1280); srd(a, DS, 'dsk', 1280)
    a.waitf(vm=0, lg=0)
    get_parity(a)
    VL, VPM, VF1, VF2, VW, VR_, VE, T = 2, 3, 4, 5, 6, 7, 8, 12
    ACC, PX, PM, ZF, EP = 24, 88, 152, 168, 232
    wait_all_arrived(a, T)
    a(f"""
    v_lshlrev_b32 v{VL}, 4, v{V_LANE}
    v_and_b32 v{T}, 15, v{V_LANE}
    v_lshrrev_b32 v{T+1}, 4, v{V_LANE}
    v_mul_u32_u24 v{VPM}, 2560, v{T+1}
    v_lshl_add_u32 v{VPM}, v{T}, 4, v{VPM}
    s_lshl_b32 s30, s{S_WAVE}, 14
    v_add_u32 v{VW}, s30, v{VL}
    s_lshl_b32 s30, s{S_WAVE}, 12
    v_add_u32 v{VR_}, s30, v{VL}
    s_lshl_b32 s30, s{S_WAVE}, 10
    s_add_u32 s30, s30, {flag_off(R_VO)}
    v_and_b32 v{T+2}, 7, v{V_LANE}
    v_lshl_add_u32 v{VF1}, v{T+2}, 7, s30
    s_mov_b32 s44, 0xffff0000
    """)
    a.label('L_xc_loop')
    sk = a.lab('xk')
    a(f'v_mov_b32 v{T}, {65536}')
    a(f's_cmp_lg_u32 s{S_WAVE}, 0'); a(f's_cbranch_scc1 {sk}')
    a(f"""
    v_mov_b32 v{T+1}, 16
    v_mov_b32 v{T+2}, 1
    s_mov_b64 exec, 1
    buffer_atomic_add v{T+2}, v{T+1}, s[{DBG}:{DBG+3}], 0 offen sc0 sc1
    ds_write_b32 v{T}, v{T+2}
    s_mov_b64 exec, -1
    """)
    a.waitf(lg=0)
    a.label(sk)
    a('s_barrier')
    a(f'ds_read_b32 v{T+1}, v{T}')
    a(f'v_readfirstlane_b32 s50, v{T+1}')
    a('s_cmp_ge_u32 s50, 320'); a('s_cbranch_scc1 L_end')
    a(f"""
    s_mul_i32 s52, s50, 13108
    s_lshr_b32 s52, s52, 16                 ; segment
    s_mul_i32 s30, s52, 5
    s_sub_u32 s53, s50, s30
    """)
    assert all((t * 13108) >> 16 == t // 5 for t in range(320))
    def wait_flags(vaddr):
        lp = a.lab('xp'); ok = a.lab('xo')
        a('s_mov_b32 s31, 0')
        keep = list(a.vm)
        a.label(lp)
        a(f"""
        buffer_load_dwordx4 {vr(T,4)}, v{vaddr}, s[{WS}:{WS+3}], 0 offen sc1
        s_add_u32 s31, s31, 1
        s_cmp_gt_u32 s31, {SPIN_MAX}
        s_cbranch_scc1 L_abort
        v_min_u32 v{T}, v{T}, v{T+1}
        v_min3_u32 v{T}, v{T}, v{T+2}, v{T+3}
        v_cmp_ge_u32 vcc, s52, v{T}
        s_cbranch_vccz {ok}
        s_sleep 4
        s_branch {lp}
        """)
        a.label(ok, fresh=True)
    wait_flags(VF1)
    a(f"""
    s_mul_i32 s54, s52, {40*32768}
    s_lshl_b32 s30, s53, 18
    s_add_u32 s54, s54, s30
    s_lshl_b32 s30, s{S_WAVE}, 13
    s_add_u32 s54, s54, s30
    s_add_u32 s54, s54, {VO_BASE}
    """)
    VOR = lambda hh, dt: 256 + (dt * 8 + hh) * 4
    for dt in range(8):
        for q in range(2):
            a(f's_add_u32 s34, s54, {dt*32768 + q*4096}')
            for k in range(4): a(f'buffer_load_dwordx4 {ur(VOR(4*q+k, dt), 4)}, v{VL}, s[{WS}:{WS+3}], s34 offen offset:{k*1024} sc1')
    a(f"""
    s_lshl_b32 s30, s{S_WAVE}, 3
    v_and_b32 v{T}, 7, v{V_LANE}
    v_add_u32 v{T}, s30, v{T}
    v_and_b32 v{T+1}, 8, v{V_LANE}
    v_lshl_add_u32 v{T}, v{T+1}, 2, v{T}
    s_lshl_b32 s30, s53, 1
    s_add_u32 s30, s30, {R_S5B - 16}
    v_add_u32 v{T+1}, s30, v{V_LANE}
    v_cmp_gt_u32 vcc, 16, v{V_LANE}
    v_cndmask_b32 v{T}, v{T+1}, v{T}, vcc
    s_lshr_b32 s30, s52, 4
    s_add_u32 s30, s30, {R_SP}
    v_mov_b32 v{T+1}, s30
    v_cmp_gt_u32 vcc, 18, v{V_LANE}
    v_cndmask_b32 v{T}, v{T+1}, v{T}, vcc
    v_lshlrev_b32 v{VF2}, 7, v{T}
    v_add_u32 v{VF2}, {FL_BASE}, v{VF2}
    """)
    a(f"""
    s_lshr_b32 s30, s{S_WAVE}, 1
    s_lshl_b32 s31, s52, 1
    s_add_u32 s31, s31, s30
    s_lshl_b32 s32, s53, 3
    s_and_b32 s33, s{S_WAVE}, 1
    s_lshl_b32 s33, s33, 2
    s_add_u32 s32, s32, s33
    s_mul_i32 s55, s31, 40
    s_add_u32 s55, s55, s32
    s_lshl_b32 s55, s55, 10
    s_add_u32 s55, s55, {BB_BASE}
    s_lshl_b32 s31, s31, 4
    v_and_b32 v{T}, 15, v{V_LANE}
    v_add_u32 v{T}, s31, v{T}               ; token
    v_lshrrev_b32 v{T+1}, 4, v{V_LANE}
    s_lshl_b32 s32, s32, 5
    v_lshl_add_u32 v{VE}, v{T+1}, 3, s32
    v_mul_u32_u24 v{VE+1}, 1280, v{T}
    v_add_u32 v{VE+1}, v{VE+1}, v{VE}       ; x offset
    v_lshlrev_b32 v{VE+2}, 1, v{VE+1}
    v_lshlrev_b32 v{VE+3}, 3, v{T}
    v_add_u32 v{VE+3}, {G_BASE}, v{VE+3}
    """)
    XR, DR, GR = EP, EP + 8, EP + 16
    for k in range(4):
        a(f'buffer_load_dwordx2 {vr(XR + 2*k, 2)}, v{VE+1}, s[{XS}:{XS+3}], 0 offen offset:{k*32}')
        a(f'buffer_load_dwordx2 {vr(DR + 2*k, 2)}, v{VE}, s[{DS}:{DS+3}], 0 offen offset:{k*32}')
    wait_flags(VF2)
    step_base(a, S_BASE, 52)
    a(f"""
    s_mul_i32 s56, s52, {32*2560}
    s_mul_i32 s30, s{S_WAVE}, {8*2560}
    s_add_u32 s56, s56, s30
    s_add_u32 s56, s56, {PX_BASE}
    s_lshl_b32 s30, s53, 17
    s_add_u32 s57, s{S_BASE}, s30
    s_lshl_b32 s30, s{S_WAVE}, 11
    s_add_u32 s57, s57, s30
    s_add_u32 s57, s57, {8*16384}
    """)
    for hh in range(8):
        a(f's_add_u32 s34, s56, {hh*2560}')
        for it in range(2): a(f'buffer_load_dwordx4 {vr(PX + 8*hh + 4*it, 4)}, v{VL}, s[{WS}:{WS+3}], s34 offen offset:{it*1024} sc1')
    for u in range(2):
        a(f's_add_u32 s34, s56, {u*4*2560}')
        for it in range(2): a(f'buffer_load_dwordx4 {vr(PM + 8*u + 4*it, 4)}, v{VPM}, s[{WS}:{WS+3}], s34 offen offset:{2048 + it*256} sc1')
    for dt in range(8):
        a(f's_add_u32 s34, s57, {dt*16384}')
        for u in range(2): a(f'buffer_load_dwordx4 {vr(ZF + 8*dt + 4*u, 4)}, v{VL}, s[{WS}:{WS+3}], s34 offen offset:{u*1024} sc1')
    a(f'buffer_load_dwordx2 {vr(GR,2)}, v{VE+3}, s[{WS}:{WS+3}], 0 offen sc1')
    for hh in range(8):
        for it in range(2):
            for dt in range(8):
                c = vr(ACC + 32*it + 4*dt, 4)
                a(f'v_mfma_f32_16x16x32_bf16 {c}, {ur(VOR(hh, dt), 4)}, {vr(PX + 8*hh + 4*it, 4)}, {c if hh else 0}')
    YR = PX
    for k in range(4): a(f'buffer_load_dwordx4 {vr(YR + 4*k, 4)}, v{VL}, s[{WS}:{WS+3}], s55 offen offset:{k*1024} sc1')
    for dt in range(8):
        for u in range(2):
            for it in range(2):
                c = vr(ACC + 32*it + 4*dt, 4)
                a(f'v_mfma_f32_16x16x32_bf16 {c}, {vr(ZF + 8*dt + 4*u, 4)}, {vr(PM + 8*u + 4*it, 4)}, {c}')
    for t in range(16): a(f'ds_write_b128 v{VW}, {vr(ACC + 4*t, 4)} offset:{t*1024}')
    a.waitf(lg=0); a('s_barrier')
    for k in range(4):
        for w in range(4): a(f'ds_read_b128 {vr(ACC + 16*k + 4*w, 4)}, v{VR_} offset:{w*16384 + k*1024}')
    for k in range(4):
        b = ACC + 16*k; y = YR + 4*k
        for i in range(4): a(f'v_add_f32 v{b+i}, v{b+i}, v{b+4+i}')
        for i in range(4): a(f'v_add_f32 v{b+8+i}, v{b+8+i}, v{b+12+i}')
        for i in range(4): a(f'v_add_f32 v{b+i}, v{b+i}, v{b+8+i}')
        def rnd(x0, x1, t):
            a(f'v_cvt_pk_bf16_f32 v{t}, v{x0}, v{x1}'); a(f'v_lshlrev_b32 v{x0}, 16, v{t}'); a(f'v_and_b32 v{x1}, s44, v{t}')
        for p in range(2):
            x0, x1, s0, s1, t = b + 2*p, b + 2*p + 1, b + 4, b + 5, b + 8
            rnd(x0, x1, t)
            a(f'v_mul_f32 v{x0}, v{x0}, v{GR}'); a(f'v_mul_f32 v{x1}, v{x1}, v{GR}')
            rnd(x0, x1, t)
            a(f"""
            v_lshlrev_b32 v{s0}, 16, v{XR+2*k+p}
            v_and_b32 v{s1}, s44, v{XR+2*k+p}
            v_lshlrev_b32 v{s0+2}, 16, v{DR+2*k+p}
            v_and_b32 v{s1+2}, s44, v{DR+2*k+p}
            v_mul_f32 v{s0}, v{s0}, v{s0+2}
            v_mul_f32 v{s1}, v{s1}, v{s1+2}
            """)
            rnd(s0, s1, t)
            a(f"""
            v_add_f32 v{s0}, v{s0}, v{y+2*p}
            v_add_f32 v{s1}, v{s1}, v{y+2*p+1}
            v_mul_f32 v{s0}, v{s0}, v{GR+1}
            v_mul_f32 v{s1}, v{s1}, v{GR+1}
            v_add_f32 v{x0}, v{x0}, v{s0}
            v_add_f32 v{x1}, v{x1}, v{s1}
            """)
        a(f'buffer_store_dwordx4 {vr(b,4)}, v{VE+2}, s[{OUT}:{OUT+3}], 0 offen offset:{k*64}')
    a('s_branch L_xc_loop')
```

```python
import sys, importlib
from common import *
import workers
def build(enabled=('pj', 'vo', 'c', 'b', 'r', 's5a', 's5b', 'xc'), **opt):
    a = Asm(); a.opt = opt
    a(f'''
    s_cmp_ge_u32 s2, 256
    s_cbranch_scc1 L_end
    s_load_dwordx2 s[{WS}:{WS+1}], s[0:1], {KA["ws"]}
    s_load_dwordx2 s[{DBG}:{DBG+1}], s[0:1], {KA["dbg"]}
    s_mov_b32 s{WS+2}, {WS_BYTES}
    s_mov_b32 s{WS+3}, 0x20000
    s_mov_b32 s{DBG+2}, 256
    s_mov_b32 s{DBG+3}, 0x20000
    v_and_b32 v{V_LANE}, 63, v0
    v_lshrrev_b32 v2, 6, v0
    v_readfirstlane_b32 s{S_WAVE}, v2
    s_and_b32 s30, s2, 3
    s_lshr_b32 s31, s2, 3
    s_lshl_b32 s31, s31, 2
    s_add_u32 s30, s30, s31
    s_and_b32 s31, s2, 4
    s_lshl_b32 s31, s31, 5
    s_add_u32 s{S_ROLE}, s30, s31
    ''')
    a.waitf(lg=0)
    table = [('c', R_B), ('b', R_R), ('r', R_S5A), ('s5a', R_S5B), ('s5b', R_SP), ('sp', R_PJ), ('pj', R_VO), ('vo', 256)]
    for nm, hi in table[:-1]:
        a(f's_cmp_lt_u32 s{S_ROLE}, {hi}')
        a(f's_cbranch_scc1 L_role_{nm if nm in enabled else "sp"}')
    a(f's_branch L_role_{"vo" if "vo" in enabled else "sp"}')
    mods = {'pj': workers.role_proj, 'vo': workers.role_vo}
    try:
        import chain; mods.update({'c': chain.role_c, 'b': chain.role_b, 'r': chain.role_r})
    except ImportError: pass
    try:
        import s5; mods.update({'s5a': s5.role_s5a, 's5b': s5.role_s5b})
    except ImportError: pass
    for nm in ('c', 'b', 'r', 's5a', 's5b', 'pj', 'vo'):
        if nm in enabled:
            a.raw('.p2align 6')
            a.label(f'L_role_{nm}', fresh=True); mods[nm](a)
    a.label('L_role_sp', fresh=True)
    arrive(a, 8)
    a(f's_cmp_lt_u32 s{S_ROLE}, {R_S5A}')
    a('s_cbranch_scc1 L_end')
    if 'xc' in enabled or 'g' in enabled:
        a(f's_cmp_lt_u32 s{S_ROLE}, {R_SP}'); a('s_cbranch_scc1 L_xc')
        a(f's_cmp_ge_u32 s{S_ROLE}, {R_PJ}'); a('s_cbranch_scc1 L_xc')
        s5.role_gate(a)
    a.label('L_xc')
    if 'xc' in enabled:
        import xc; xc.role_xc(a)
    a('s_branch L_end')
    a.saved.setdefault('L_abort', a.state())
    a.label('L_abort', fresh=True)
    a.waitf(vm=0, lg=0)
    a(f'''
    v_mov_b32 v2, 4
    v_mov_b32 v3, 1
    s_mov_b64 exec, 1
    buffer_atomic_add v3, v2, s[{DBG}:{DBG+3}], 0 offen sc1
    v_mov_b32 v2, 8
    v_mov_b32 v3, s{S_ROLE}
    buffer_store_dword v3, v2, s[{DBG}:{DBG+3}], 0 offen sc1
    ''')
    a.saved['L_end'] = ([], [], False); a.vm = []; a.lg = []; a.smem = False
    a.label('L_end')
    a('s_endpgm')
    ref = open(f'cdna_kernels/{NAME}.s.ref').read().split('\n')
    head = [l for l in ref if l.startswith(';') and '@launch' not in l and 'Override' not in l and 'grid=ceil' not in l]
    txt = '\n'.join(head) + f'''
; @launch grid=(256,1,1) block=(256,1,1) lds=163840
.amdgcn_target "amdgcn-amd-amdhsa--gfx950"
.text
.globl {NAME}_kernel
.p2align 8
.type {NAME}_kernel,@function
{NAME}_kernel:
''' + a.text() + f'''.section .rodata,"a"
.p2align 6
.amdhsa_kernel {NAME}_kernel
  .amdhsa_next_free_vgpr 512
  .amdhsa_next_free_sgpr 102
  .amdhsa_accum_offset 256
  .amdhsa_group_segment_fixed_size 0
  .amdhsa_kernarg_size 160
  .amdhsa_user_sgpr_count 2
  .amdhsa_user_sgpr_kernarg_segment_ptr 1
  .amdhsa_system_sgpr_workgroup_id_x 1
  .amdhsa_float_denorm_mode_32 3
.end_amdhsa_kernel
'''
    return txt
if __name__ == '__main__':
    en = sys.argv[2].split(',') if len(sys.argv) > 2 else ('pj', 'vo', 'c', 'b', 'r', 's5a', 's5b', 'xc')
    opt = dict(kv.split('=') for kv in sys.argv[3:])
    open(sys.argv[1], 'w').write(build(en, **opt))
```

```python
from emit import *
MB = 1 << 20
NAME = 'gated_mix__memory_aug_recurrent_mem_tr__ssm_conv_s5__prompt'
WS_BYTES = 256 * MB
QKV_BASE = 64 * MB; QKV_SZ = 24 * MB
VO_BASE = 136 * MB
PX_BASE = 216 * MB
HT_BASE = 222 * MB
BB_BASE = 228 * MB
G_BASE = 234 * MB
FL_BASE = 235 * MB
TS_BASE = 236 * MB
OOB = 0x7ff00000
KA = dict(x=0, mem0=8, Wq=16, Wk=24, Wv=32, Wo=40, lre=64, lim=72, Bre=80, Bim=88, Cre=96, Cim=104, ldt=112, dsk=120, gw=128, out=136, dbg=144, ws=152)
R_C, R_B, R_R, R_S5A, R_S5B, R_SP, R_PJ, R_VO = 0, 32, 64, 104, 114, 124, 128, 224
S_ROLE, S_WAVE, S_H, S_P2, S_SLOT = 2, 3, 4, 5, 6
WS, SA, SB, SC, DBG = 8, 12, 16, 20, 24
SPIN_MAX = 400000
V_TID, V_LANE = 0, 1

def srd(a, dst, slot, nbytes):
    a(f's_load_dwordx2 s[{dst}:{dst+1}], s[0:1], {KA[slot]}')
    a(f's_mov_b32 s{dst+2}, {nbytes}')
    a(f's_mov_b32 s{dst+3}, 0x20000')

def flag_off(role): return FL_BASE + role * 128

def arrive(a, vt):
    a(f'''
    v_mov_b32 v{vt}, 0
    v_lshlrev_b32 v{vt+1}, 2, v{V_LANE}
    s_lshl_b32 s30, s{S_ROLE}, 7
    s_add_u32 s30, s30, {FL_BASE}
    s_mov_b64 exec, 0xffffffff
    buffer_store_dword v{vt}, v{vt+1}, s[{WS}:{WS+3}], s30 offen sc1
    s_mov_b64 exec, -1
    ''')
    a.waitf(vm=0)
    a('s_barrier')
    l = a.lab('arr')
    a(f'''
    s_cmp_lg_u32 s{S_WAVE}, 0
    s_cbranch_scc1 {l}
    v_mov_b32 v{vt+1}, 1
    s_mov_b64 exec, 1
    buffer_atomic_add v{vt+1}, v{vt}, s[{DBG}:{DBG+3}], 0 offen sc1
    s_mov_b64 exec, -1
    ''')
    a.label(l)

S_PAR = 60
def wait_all_arrived(a, vt):
    l = a.lab('wa')
    a(f'v_mov_b32 v{vt+1}, 0')
    a('s_mov_b32 s31, 0')
    a.label(l)
    a(f'''
    buffer_load_dword v{vt}, v{vt+1}, s[{DBG}:{DBG+3}], 0 offen sc1
    s_add_u32 s31, s31, 1
    s_cmp_gt_u32 s31, {SPIN_MAX}
    s_cbranch_scc1 L_abort
    v_readfirstlane_b32 s30, v{vt}
    s_cmp_lt_u32 s30, 256
    s_cbranch_scc1 {l}
    buffer_load_dword v{vt}, v{vt+1}, s[{DBG}:{DBG+3}], 0 offen offset:12 sc1
    v_readfirstlane_b32 s{S_PAR}, v{vt}
    ''')
    if 'par' in a.opt: a(f's_mov_b32 s{S_PAR}, {0x55555555 if int(a.opt["par"]) else 0xaaaaaaaa}')

class WMat:
    def __init__(s, srd, stride, npiece, nks, R, natural, tile_sreg, dest, ntile, pair=False):
        s.pair = pair
        s.srd, s.stride, s.np, s.nks, s.R, s.natural = srd, stride, npiece, nks, R, natural
        s.tile_sreg, s.dest, s.ntile = tile_sreg, dest, ntile
        s.rowb = npiece * 16; s.blk = 8 * s.rowb; s.ni = s.blk // 1024
SLOT = 49152

def load_weights(a, mats, vt, sbase=None):
    t0 = vt; vt += 4
    for m in mats:
        m.va = vt; vt += m.ni
        m.lb = vt; m.sg = vt + 1; vt += 2
        magic = {24: 2731, 80: 820}[m.np]
        assert all((i * magic) >> 16 == i // m.np for i in range(m.ni * 64))
        sh = 0 if m.rowb % 256 == 0 else 1
        a(f's_lshr_b32 s30, s{S_WAVE}, 1')
        a(f's_and_b32 s31, s{S_WAVE}, 1')
        if m.natural:
            a('s_lshl_b32 s30, s30, 4'); a('s_lshl_b32 s31, s31, 2')
        else:
            a('s_lshl_b32 s30, s30, 3'); a('s_lshl_b32 s31, s31, 4')
        a('s_add_u32 s30, s30, s31')
        a(f's_mov_b32 s32, {m.stride}')
        for j in range(m.ni):
            a(f'''
            v_add_u32 v{t0}, {64*j}, v{V_LANE}
            v_mul_u32_u24 v{t0+1}, {magic}, v{t0}
            v_lshrrev_b32 v{t0+1}, 16, v{t0+1}
            v_mul_u32_u24 v{t0+2}, {m.np}, v{t0+1}
            v_sub_u32 v{t0}, v{t0}, v{t0+2}
            v_lshrrev_b32 v{t0+2}, {sh}, v{t0+1}
            v_lshlrev_b32 v{t0+2}, 1, v{t0+2}
            v_xor_b32 v{t0}, v{t0}, v{t0+2}
            ''')
            if m.natural:
                a(f'''
                v_and_b32 v{t0+2}, 4, v{t0+1}
                v_add_u32 v{t0+1}, v{t0+1}, v{t0+2}
                ''')
            a(f'''
            v_add_u32 v{t0+1}, s30, v{t0+1}
            v_mul_lo_u32 v{t0+1}, v{t0+1}, s32
            v_lshl_add_u32 v{m.va+j}, v{t0}, 4, v{t0+1}
            ''')
        if m.pair:
            a(f'''
            v_lshrrev_b32 v{t0}, 4, v{V_LANE}
            v_bfe_u32 v{t0+1}, v{V_LANE}, 2, 1
            v_lshl_add_u32 v{t0}, v{t0}, 1, v{t0+1}
            v_bfe_u32 v{t0+1}, v{V_LANE}, 3, 1
            v_xor_b32 v{m.sg}, v{t0}, v{t0+1}
            v_mul_u32_u24 v{m.lb}, {m.rowb}, v{t0}
            v_and_b32 v{t0}, 3, v{V_LANE}
            v_lshl_add_u32 v{m.lb}, v{t0}, 3, v{m.lb}
            ''')
            continue
        a(f'''
        v_bfe_u32 v{t0}, v{V_LANE}, 2, 3
        v_lshrrev_b32 v{m.sg}, {sh}, v{t0}
        v_mul_u32_u24 v{m.lb}, {m.rowb}, v{t0}
        v_lshrrev_b32 v{t0}, 5, v{V_LANE}
        v_mul_u32_u24 v{t0}, {2*m.blk}, v{t0}
        v_add_u32 v{m.lb}, v{m.lb}, v{t0}
        v_and_b32 v{t0}, 3, v{V_LANE}
        v_lshl_add_u32 v{m.lb}, v{t0}, 3, v{m.lb}
        ''')
    rounds = []
    for mi, m in enumerate(mats):
        assert m.R * 4 * m.blk <= SLOT
        for k0 in range(0, m.nks, m.R): rounds.append((mi, m, k0, min(m.R, m.nks - k0)))
    def issue(ri):
        mi, m, k0, n = rounds[ri]
        a(f's_mul_i32 s33, s{S_WAVE}, {m.blk}')
        for kl in range(n):
            so = (k0 + kl) * 32 * m.stride
            if sbase is not None and sbase[mi] is not None: a(f's_add_u32 s34, s{sbase[mi]}, {so}')
            else: a(f's_mov_b32 s34, {so}')
            for j in range(m.ni):
                a(f's_add_u32 m0, s33, {(ri % 3) * SLOT + kl * 4 * m.blk + j * 1024}')
                a(f'buffer_load_dwordx4 v{m.va+j}, s[{m.srd}:{m.srd+3}], s34 offen lds')
        return n * m.ni
    cnt = {}
    for ri in range(min(2, len(rounds))): cnt[ri] = issue(ri)
    for ri, (mi, m, k0, n) in enumerate(rounds):
        a.waitf(vm=cnt.get(ri + 1, 0), lg=0)
        a('s_barrier')
        if ri + 2 < len(rounds): cnt[ri + 2] = issue(ri + 2)
        a(f'v_add_u32 v{t0+2}, {(ri % 3) * SLOT}, v{m.lb}')
        for j in range(m.ntile):
            m.tile_sreg(a, j, 35)
            tt = t0 + (j & 1)
            a(f'v_xor_b32 v{tt}, s35, v{m.sg}')
            a(f'v_lshl_add_u32 v{tt}, v{tt}, 5, v{t0+2}')
            for kl in range(n):
                d = m.dest(j, k0 + kl)
                for hf in range(4 if m.pair else 2):
                    a(f'ds_read_b64_tr_b16 {ur(d + 2*hf, 2)}, v{tt} offset:{(4*kl + hf) * m.blk}')
    a.waitf(lg=0)
    a('s_barrier')

def etile_sreg(a, j, sd):
    if j < 2:
        a(f's_lshl_b32 s{sd}, s{S_WAVE}, 1')
        if j: a(f's_add_u32 s{sd}, s{sd}, 1')
    else:
        a(f's_add_u32 s{sd}, s{S_WAVE}, 8')
def dtile_sreg(a, j, sd):
    a(f's_mul_i32 s{sd}, s{S_WAVE}, 10')
    if j: a(f's_add_u32 s{sd}, s{sd}, {j}')

def interleave(a, main, side, start=0, per=1):
    for gi, g in enumerate(main):
        for x in g:
            x() if callable(x) else a(x)
        for x in side.get(gi, []):
            x() if callable(x) else a(x)

def stamp(a, vreg, lane, cyc=False):
    if not a.opt.get('ts'): return
    keep = list(a.lg)
    a('s_memtime s[98:99]' if cyc else 's_memrealtime s[98:99]'); a.waitf(lg=0)
    a.lg = keep
    if isinstance(lane, str):
        a(f's_mov_b32 m0, {lane}'); a(f'v_writelane_b32 v{vreg}, s98, m0')
    else:
        a(f'v_writelane_b32 v{vreg}, s98, {lane}')
def stamp_init(a, vreg, n):
    if not a.opt.get('ts'): return
    for i in range(n): a(f'v_mov_b32 v{vreg+i}, 0')
def stamp_dump(a, vreg, n, vt):
    if not a.opt.get('ts'): return
    a(f'''
    s_lshl_b32 s30, s{S_ROLE}, 12
    s_lshl_b32 s31, s{S_WAVE}, 10
    s_add_u32 s30, s30, s31
    s_add_u32 s30, s30, {TS_BASE}
    v_lshlrev_b32 v{vt}, 2, v{V_LANE}
    ''')
    for i in range(n): a(f'buffer_store_dword v{vreg+i}, v{vt}, s[{WS}:{WS+3}], s30 offen offset:{256*i}')
    a.waitf(vm=0)

def dpair_sreg(a, j, sd):
    a(f's_mul_i32 s{sd}, s{S_WAVE}, 10')
    if j: a(f's_add_u32 s{sd}, s{sd}, {2*j}')
```

```python
import sys
sys.path.insert(0, "mb"); sys.path.insert(0, "gen")
from runner import *
from common import NAME
for f in sys.argv[1:]:
    co = build(open(f).read(), NAME + "_kernel", 20, f[:-2], lists=True)
    print(f, cl.address_register_problem(co, NAME + "_kernel"))
```

```python
from common import *
import math
S_STEP, S_BASE, S_B2 = 61, 62, 63
CSC = (192 ** -0.5) * math.log2(math.e)
import struct
def f32(x): return '0x%08x' % struct.unpack('<I', struct.pack('<f', x))[0]
NL = 14
WL_SZ = NL * 2048
L_MEM = 4 * WL_SZ; L_KX = L_MEM + 10240; L_QI = L_KX + 24576; L_KI = L_QI + 6144
assert L_KI + 6144 + 16 <= 163840
WORK = 256 - (60 - 32 - NL) * 8

def step_base(a, dst, sstep, add=0):
    if add: a(f's_add_u32 s36, s{sstep}, {add}'); sstep = 36
    a(f'''
    s_lshr_b32 s37, s{sstep}, 1
    s_lshr_b32 s37, s{S_PAR}, s37
    s_and_b32 s37, s37, 1
    s_lshl_b32 s37, s37, 13
    s_lshl_b32 s{dst}, s{sstep}, 20
    s_add_u32 s{dst}, s{dst}, s37
    ''')
def both_halves(a, f):
    for p in (0, -1):
        a(f's_mov_b32 s{S_PAR}, {p}'); f()
def calibrate(a, T):
    done = a.lab('cal'); lp = a.lab('calp'); nw = a.lab('calw')
    a(f's_cmp_ge_u32 s{S_H}, 32'); a(f's_cbranch_scc1 {done}')
    a(f"""
    s_lshl_b32 s64, s{S_H}, 21
    s_lshl_b32 s30, s{S_WAVE}, 10
    s_add_u32 s64, s64, s30
    s_add_u32 s64, s64, {16384 + 3072}
    s_add_u32 s65, s64, 8192
    s_mov_b32 s66, -1
    s_mov_b32 s67, -1
    s_mov_b32 s68, 0
    v_mov_b32 v{T}, 0
    s_mov_b64 exec, 1
    """)
    a.waitf(vm=0)
    a.label(lp)
    for h in range(2):
        a(f'v_mov_b32 v{T+1}, 0')
        a('s_memtime s[70:71]'); a.waitf(lg=0)
        a(f'buffer_atomic_add v{T+1}, v{T}, s[{WS}:{WS+3}], s{64+h} offen sc0 sc1')
        a.waitf(vm=0)
        a('s_memtime s[72:73]'); a.waitf(lg=0)
        a('s_sub_u32 s70, s72, s70'); a(f's_min_u32 s{66+h}, s{66+h}, s70')
    a(f"""
    s_add_u32 s68, s68, 1
    s_cmp_lt_u32 s68, {int(a.opt.get('caln', 3))}
    s_cbranch_scc1 {lp}
    s_lshl_b32 s30, s{S_WAVE}, 3
    v_mov_b32 v{T}, s30
    v_mov_b32 v{T+2}, s66
    v_mov_b32 v{T+3}, s67
    ds_write_b64 v{T}, {vr(T+2,2)}
    s_mov_b64 exec, -1
    """)
    a.waitf(lg=0)
    a('s_barrier')
    a(f's_cmp_lg_u32 s{S_WAVE}, 0'); a(f's_cbranch_scc1 {done}')
    a(f"""
    v_mov_b32 v{T}, 0
    ds_read_b128 v[24:27], v{T}
    ds_read_b128 v[28:31], v{T} offset:16
    v_min3_u32 v24, v24, v26, v28
    v_min3_u32 v25, v25, v27, v29
    v_min_u32 v24, v24, v30
    v_min_u32 v25, v25, v31
    v_readfirstlane_b32 s66, v24
    v_readfirstlane_b32 s67, v25
    s_mov_b64 exec, 1
    s_cmp_lt_u32 s67, s66
    s_cselect_b32 s68, 1, 0
    s_min_u32 s69, s66, s67
    s_max_u32 s70, s66, s67
    s_mul_i32 s71, s69, 5
    s_lshl_b32 s70, s70, 2
    s_cmp_lt_u32 s71, s70
    s_cselect_b32 s70, 1, 0
    s_cmp_lt_u32 s69, 760
    s_cselect_b32 s70, s70, 0
    s_lshl_b32 s68, s68, s{S_H}
    s_lshl_b32 s70, s70, s{S_H}
    v_mov_b32 v{T+2}, s68
    v_mov_b32 v{T+3}, s70
    v_mov_b32 v{T}, 24
    buffer_atomic_or_x2 {vr(T+2,2)}, v{T}, s[{DBG}:{DBG+3}], 0 offen sc1
    """)
    if a.opt.get('ts'):
        a(f's_lshl_b32 s68, s{S_H}, 2'); a(f's_add_u32 s68, s68, {TS_BASE + 3*MB}'); a('s_lshl_b32 s67, s67, 16'); a('s_or_b32 s66, s66, s67')
        a(f'v_mov_b32 v{T}, s68'); a(f'v_mov_b32 v{T+1}, s66'); a(f'buffer_store_dword v{T+1}, v{T}, s[{WS}:{WS+3}], 0 offen sc1')
    a('s_mov_b64 exec, -1')
    a.label(done)

def maxtree(a, dst, regs):
    regs = list(regs); acc = [None, None]; k = 0
    while regs:
        d = dst + k
        if acc[k] is None:
            t = regs[:3]; regs = regs[3:]
            if len(t) == 3: a(f'v_max3_u32 v{d}, v{t[0]}, v{t[1]}, v{t[2]}')
            elif len(t) == 2: a(f'v_max_u32 v{d}, v{t[0]}, v{t[1]}')
            else: a(f'v_mov_b32 v{d}, v{t[0]}')
            acc[k] = d
        else:
            t = regs[:2]; regs = regs[2:]
            if len(t) == 2: a(f'v_max3_u32 v{d}, v{d}, v{t[0]}, v{t[1]}')
            else: a(f'v_max_u32 v{d}, v{d}, v{t[0]}')
        k ^= 1
    if acc[1] is not None: a(f'v_max_u32 v{dst}, v{dst}, v{dst+1}')

def poll(a, loads, regs, vt, stem):
    l = a.lab(stem)
    a('s_mov_b32 s31, 0')
    a.vm = []
    a.label(l)
    for x in loads: a(x)
    a(f's_add_u32 s31, s31, 1'); a(f's_cmp_gt_u32 s31, {SPIN_MAX}')
    a.branch('s_cbranch_scc1 L_abort', nofence=True)
    maxtree(a, vt, regs)
    a(f'v_cmp_eq_u32 vcc, -1, v{vt}')
    assert not a.vm
    a.branch(f's_cbranch_vccnz {l}', nofence=True)

def allred(op, x, t):
    return [f'v_mov_b32 v{t}, v{x}', f'v_permlane32_swap_b32 v{x}, v{t}', f'{op} v{x}, v{x}, v{t}',
            f'v_mov_b32 v{t}, v{x}', f'v_permlane16_swap_b32 v{x}, v{t}', f'{op} v{x}, v{x}, v{t}']

class Sched:
    def __init__(s, n): s.n = n; s.side = {}; s.v = [0] * n; s.w = [0] * n; s.tail = []
    @staticmethod
    def cls(x):
        if callable(x): return 0, 0
        op = x.split()[0]
        if op.startswith('v_mfma'): return 0, 0
        if op.startswith('v_'): return 1, 0
        if op in ('ds_write_b64', 'ds_write_b128') or op.startswith('buffer_store'): return 0, 2
        if op.startswith(('ds_', 'buffer_')): return 0, 1
        return 0, 0
    def put(s, g, l):
        for x in l:
            v, w = s.cls(x); s.v[g] += v; s.w[g] += w; s.side.setdefault(g, []).append(x)
    def chain(s, g, items, deadline=None):
        for it in items:
            x, d = it if isinstance(it, tuple) else (it, 0)
            g += d; v, w = s.cls(x)
            while g < s.n and (s.v[g] + v > 1 or s.w[g] + w > 2): g += 1
            if g >= s.n: s.tail.append(x)
            else: s.put(g, [x])
        assert deadline is None or g <= deadline, (items, g, deadline)
        return g
    def group(s, g, l):
        v = sum(s.cls(x)[0] for x in l); w = sum(s.cls(x)[1] for x in l)
        while s.v[g] + v > 1 or s.w[g] + w > 2: g += 1
        s.put(g, l); return g
class Units:
    def __init__(s, order, in_lds, stg, vwl):
        s.loc = {}; s.ldsn = {}; nreg = 0
        for pos, u in enumerate(order):
            if pos in in_lds: s.ldsn[u] = len(s.ldsn)
            else:
                s.loc[u] = 256 + 8 * nreg if nreg < 32 else WORK + 8 * (nreg - 32); nreg += 1
        assert len(s.ldsn) == NL and nreg == 60 - NL
        s.stg, s.vwl = stg, vwl
    def reg(s, u): return s.loc[u] if u in s.loc else s.stg + 8 * (s.ldsn[u] % 3)
    def fetch(s, n):
        if n >= NL: return []
        b = s.stg + 8 * (n % 3)
        return [f'ds_read_b128 {vr(b + 4*i, 4)}, v{s.vwl} offset:{n*2048 + i*1024}' for i in range(2)]
    def after(s, u): return s.fetch(s.ldsn[u] + 3) if u in s.ldsn else []
    def stage(s, S, order):
        pos = {u: p for p, u in enumerate(order)}
        use = sorted(pos[u] for u in s.ldsn)
        for n in range(3, NL): S.chain(use[n - 3], s.fetch(n), deadline=use[n] - 5)
    def hold(s, base):
        return lambda u: s.loc[u] if u in s.loc else base + 8 * s.ldsn[u]
    def park(s, a, base):
        for n in range(NL):
            for i in range(2): a(f'ds_write_b128 v{s.vwl}, {vr(base + 8*n + 4*i, 4)} offset:{n*2048 + i*1024}')
        a.waitf(lg=0)

def h_setup(a, VG, VWL, VRD, IDX):
    a(f'''
    s_and_b32 s30, s{S_SLOT}, 3
    s_lshl_b32 s31, s30, 15
    v_lshlrev_b32 v{VG}, 4, v{V_TID}
    v_add_u32 v{VG+3}, {L_MEM}, v{VG}
    v_add_u32 v{VG}, s31, v{VG}
    v_add_u32 v{VG+1}, 4096, v{VG}
    s_add_u32 s31, s31, 16384
    v_lshl_add_u32 v{VG+2}, v{V_TID}, 3, s31
    v_lshlrev_b32 v{VG+4}, 3, v{V_TID}
    v_add_u32 v{VG+4}, {L_MEM + 8192}, v{VG+4}
    s_mul_i32 s30, s{S_WAVE}, {WL_SZ}
    v_lshl_add_u32 v{VWL}, v{V_LANE}, 4, s30
    v_lshlrev_b32 v{VRD}, 4, v{V_LANE}
    v_add_u32 v{VRD}, {L_MEM}, v{VRD}
    v_and_b32 v{IDX}, 8, v{V_LANE}
    v_cmp_eq_u32 vcc, 0, v{IDX}
    v_mov_b32 v{IDX}, 0xeeee
    v_mov_b32 v{IDX+1}, 0x4444
    v_cndmask_b32 v{IDX}, v{IDX}, v{IDX+1}, vcc
    ''')
def gather_mem(a, VG, VRD, AF, vt):
    L = AF + 16
    l = a.lab('gm')
    a('s_mov_b32 s31, 0')
    a.waitf(lg=0)
    a.vm = []; a.label(l)
    a(f'''
    buffer_load_dwordx4 {vr(L,4)}, v{VG}, s[{WS}:{WS+3}], s{S_BASE} offen sc1
    buffer_load_dwordx4 {vr(L+4,4)}, v{VG+1}, s[{WS}:{WS+3}], s{S_BASE} offen sc1
    buffer_load_dwordx2 {vr(L+8,2)}, v{VG+2}, s[{WS}:{WS+3}], s{S_BASE} offen sc1
    s_add_u32 s31, s31, 1
    s_cmp_gt_u32 s31, {SPIN_MAX}
    ''')
    a.branch('s_cbranch_scc1 L_abort', nofence=True)
    wr = [f'ds_write_b128 v{VG+3}, {vr(L,4)}', f'ds_write_b128 v{VG+3}, {vr(L+4,4)} offset:4096', f'ds_write_b64 v{VG+4}, {vr(L+8,2)}']
    sp = int(a.opt.get('spw', 1))
    if sp: a(wr[0])
    a(f'v_max3_u32 v{vt}, v{L}, v{L+1}, v{L+2}')
    if sp: a(wr[1])
    a(f'v_max3_u32 v{vt+1}, v{L+3}, v{L+4}, v{L+5}'); a(f'v_max3_u32 v{vt}, v{vt}, v{L+6}, v{L+7}')
    if sp: a(wr[2])
    a(f'v_max3_u32 v{vt+1}, v{vt+1}, v{L+8}, v{L+9}'); a(f'v_max_u32 v{vt}, v{vt}, v{vt+1}')
    a(f'v_cmp_eq_u32 vcc, -1, v{vt}')
    assert not a.vm
    a.branch(f's_cbranch_vccnz {l}', nofence=True)
    if not sp: [a(x) for x in wr]
    if a.opt.get('ts'): a('s_mov_b32 s92, s31')
    tick(a, 0)
    a.waitf(lg=0)
    a('s_barrier')
    tick(a, 1)
    rd = [f'ds_read_b128 {vr(AF + 4*t, 4)}, v{VRD} offset:{t*1024}' for t in range(10)]
    n = int(a.opt.get('n0', 4))
    for x in rd[:n]: a(x)
    return rd[n:]
def sm(acc, A, B, IDX): return f'v_smfmac_f32_16x16x64_bf16 {vr(acc,4)}, {vr(A,4)}, {ur(B,8)}, v{IDX}'
def flag_addr(a, v):
    a(f'''
    s_lshl_b32 s30, s{S_ROLE}, 7
    s_lshl_b32 s31, s{S_WAVE}, 2
    s_add_u32 s30, s30, s31
    s_add_u32 s30, s30, {FL_BASE}
    v_mov_b32 v{v}, s30
    ''')
def flag_store(a, vaddr, vt, sval):
    a(f'v_mov_b32 v{vt}, {sval}'); a('s_mov_b64 exec, 1')
    a(f'buffer_store_dword v{vt}, v{vaddr}, s[{WS}:{WS+3}], 0 offen sc1'); a('s_mov_b64 exec, -1')
def need_flag4(a, sseen, sneed, sline, vt, vz, want=None):
    ok = a.lab('fok'); lp = a.lab('fpl')
    a(f's_cmp_gt_u32 s{sseen}, s{want or sneed}'); a(f's_cbranch_scc1 {ok}')
    a('s_mov_b32 s31, 0')
    a.label(lp)
    a(f'''
    buffer_load_dwordx4 {vr(vt,4)}, v{vz}, s[{WS}:{WS+3}], s{sline} offen sc1
    s_add_u32 s31, s31, 1
    s_cmp_gt_u32 s31, {SPIN_MAX}
    s_cbranch_scc1 L_abort
    v_min_u32 v{vt}, v{vt}, v{vt+1}
    v_min3_u32 v{vt}, v{vt}, v{vt+2}, v{vt+3}
    v_readfirstlane_b32 s{sseen}, v{vt}
    s_cmp_le_u32 s{sseen}, s{sneed}
    s_cbranch_scc1 {lp}
    ''')
    a.label(ok)


def tick(a, i, force=False):
    if a.opt.get('tp') and not force and i not in (1, 4): return
    if a.opt.get('ts'): a.raw(f'    {"s_memtime" if a.opt.get("tp") else "s_memrealtime"} s[{80+2*i}:{81+2*i}]')
def tick_out(a, n, v):
    if not a.opt.get('ts'): return
    if a.opt.get('tp'): n = 7
    a.waitf(lg=0)
    for i in range(n): a(f'v_writelane_b32 v{v}, s{80+2*i}, {i}')
    a(f'''
    s_lshl_b32 s30, s{S_ROLE}, 13
    s_lshl_b32 s31, s{S_WAVE}, 11
    s_add_u32 s30, s30, s31
    s_lshl_b32 s31, s{S_STEP}, 5
    s_add_u32 s30, s30, s31
    s_add_u32 s30, s30, {TS_BASE + 4*MB}
    v_lshlrev_b32 v{v+1}, 2, v{V_LANE}
    s_mov_b64 exec, 0xff
    buffer_store_dword v{v}, v{v+1}, s[{WS}:{WS+3}], s30 offen
    s_mov_b64 exec, -1
    ''')
def wait_writes(a):
    n = 0
    for d, src in reversed(a.lg):
        if src.startswith('ds_write'): break
        n += 1
    a.waitf(lg=min(n, 15))
def tp_put(a, put, lo, hi):
    if a.opt.get('tp'):
        for slot, p in zip((0, 2, 3, 5, 6), a.opt['tp'].split('_')):
            if lo <= int(p) < hi: put(int(p) - lo, [lambda slot=slot: tick(a, slot, True)])
def tp_at(a, p):
    if a.opt.get('tp'):
        for slot, q in zip((0, 2, 3, 5, 6), a.opt['tp'].split('_')):
            if int(q) == p: tick(a, slot, True)
def smark(a, i):
    if not a.opt.get('ts'): return
    a('s_memrealtime s[98:99]'); a.waitf(lg=0); a(f's_mov_b32 s{94+i}, s98')
def smark_out(a, v, n):
    if not a.opt.get('ts'): return
    for i in range(n): a(f'v_writelane_b32 v{v}, s{94+i}, {i}')
    a(f"""
    s_lshl_b32 s30, s{S_ROLE}, 12
    s_lshl_b32 s31, s{S_WAVE}, 10
    s_add_u32 s30, s30, s31
    s_add_u32 s30, s30, {TS_BASE + 768}
    v_lshlrev_b32 v{v+1}, 2, v{V_LANE}
    buffer_store_dword v{v}, v{v+1}, s[{WS}:{WS+3}], s30 offen
    """)

def role_b(a):
    a.c('===== B: v = mem Wv[h], Z = v Wo[h] =====')
    a(f's_sub_u32 s{S_H}, s{S_ROLE}, {R_B}')
    srd(a, SA, 'Wv', 640 * 12288); srd(a, SB, 'Wo', 32 * 245760)
    a.waitf(lg=0)
    smark(a, 0)
    VG, VWL, VRD, IDX, VZ4, VZ2, VIW, VIW3, VIR, VFL, T = 2, 7, 8, 9, 11, 13, 14, 15, 16, 10, 18
    ONES, AF, AV, STG, AZ = 20, 24, 64, 76, 100
    VA, PK = 120, 24
    def zaddr(VZ4=VZ4, VZ2=VZ2, T=T, ONES=ONES):
        a(f"""
        s_mul_i32 s30, s{S_WAVE}, 10
        s_add_u32 s30, s30, 8
        s_lshl_b32 s30, s30, 14
        s_lshl_b32 s31, s{S_H}, 8
        s_add_u32 s30, s30, s31
        v_and_b32 v{T}, 15, v{V_LANE}
        v_lshl_add_u32 v{T}, v{T}, 4, s30
        v_lshrrev_b32 v{T+1}, 5, v{V_LANE}
        v_lshl_add_u32 v{VZ4}, v{T+1}, 14, v{T}
        v_bfe_u32 v{T+1}, v{V_LANE}, 4, 1
        v_lshl_add_u32 v{VZ4}, v{T+1}, 15, v{VZ4}
        v_add_u32 v{VZ4+1}, {4*16384}, v{VZ4}
        v_lshrrev_b32 v{T+1}, 5, v{V_LANE}
        v_lshl_add_u32 v{VZ2}, v{T+1}, 14, v{T}
        v_bfe_u32 v{T+1}, v{V_LANE}, 4, 1
        v_lshl_add_u32 v{VZ2}, v{T+1}, 3, v{VZ2}
        v_add_u32 v{VZ2}, {8*16384}, v{VZ2}
        """)
    a(f's_mov_b32 s{S_STEP}, 0')
    ALT = int(a.opt.get('alt', 2)); ZE = int(a.opt.get('ze', 3))
    order = [('v', j, t) for t in range(ALT) for j in (0, 1)] + [('v', j, t) for j in (0, 1) for t in range(ALT, 10)] + [('v', 2, t) for t in range(10)]
    order += [('o', j, u) for u in (0, 1) for j in range(5)] + [('o', j, u) for u in (2, 3) for j in range(ZE)]
    order += [('o', j, u) for j in range(ZE) for u in (4, 5)] + [('o', j, u) for j in range(ZE, 5) for u in (2, 3, 4, 5)]
    def vtile_sreg(a, j, sd): a(f's_add_u32 s{sd}, s{S_WAVE}, {4*j}')
    U = Units(order, {3, 8, 13, 18, 22, 26, 30, 34, 38, 42, 46, 50, 54, 58}, STG, VWL)
    HB = WORK - 8 * NL; hold = U.hold(HB)
    a(f's_mul_i32 s41, s{S_H}, 384'); a(f's_mul_i32 s42, s{S_H}, 245760')
    load_weights(a, [WMat(SA, 12288, 24, 20, 2, True, vtile_sreg, lambda j, ks: hold(('v', j, ks >> 1)) + 4 * (ks & 1), 3),
                     WMat(SB, 1280, 80, 6, 1, False, dpair_sreg, lambda j, ks: hold(('o', j, ks)), 5, pair=True)], 2, sbase=[41, 42], vc=138)
    h_setup(a, VG, VWL, VRD, IDX)
    U.park(a, HB)
    zaddr()
    a(f"""
    v_and_b32 v{T}, 15, v{V_LANE}
    v_lshlrev_b32 v{T}, 4, v{T}
    v_lshrrev_b32 v{T+1}, 1, v{V_LANE}
    v_xor_b32 v{T+1}, v{T+1}, v{V_LANE}
    v_and_b32 v{T+1}, 8, v{T+1}
    v_add_u32 v{T}, v{T}, v{T+1}
    v_lshrrev_b32 v{T+1}, 5, v{V_LANE}
    s_lshl_b32 s30, s{S_WAVE}, 8
    s_add_u32 s30, s30, {L_QI}
    v_lshl_add_u32 v{VIW3}, v{T+1}, 2, v{T}
    s_and_b32 s31, s{S_WAVE}, 1
    s_lshl_b32 s31, s31, 5
    v_xor_b32 v{VIW3}, s31, v{VIW3}
    v_add_u32 v{VIW3}, s30, v{VIW3}
    """)
    a(f"""
    v_lshrrev_b32 v{VIR}, 4, v{V_LANE}
    v_lshlrev_b32 v{VIR}, 6, v{VIR}
    v_bfe_u32 v{T}, v{V_LANE}, 3, 1
    v_lshl_add_u32 v{VIR}, v{T}, 8, v{VIR}
    v_lshl_add_u32 v{VIR}, v{T}, 5, v{VIR}
    v_bfe_u32 v{T}, v{V_LANE}, 2, 1
    v_lshl_add_u32 v{VIR}, v{T}, 4, v{VIR}
    v_lshrrev_b32 v{T}, 5, v{V_LANE}
    v_xor_b32 v{T}, v{T}, v{V_LANE}
    v_and_b32 v{T}, 1, v{T}
    v_lshl_add_u32 v{VIR}, v{T}, 3, v{VIR}
    v_add_u32 v{VIR}, {L_QI}, v{VIR}
    v_xor_b32 v{VIR+1}, 32, v{VIR}
    """)
    flag_addr(a, VFL)
    smark(a, 1)
    wait_all_arrived(a, T)
    smark(a, 2)
    smark_out(a, T, 3)
    step_base(a, S_BASE, S_STEP)
    a.label('L_b_loop')
    for i in range(12): a(f'v_mov_b32 v{AV+i}, 0')
    for i in range(20): a(f'v_mov_b32 v{AZ+i}, 0')
    for n in range(3): [a(x) for x in U.fetch(n)]
    later = gather_mem(a, VG, VRD, AF, T)
    if int(a.opt.get('bsl', 0)): a(f's_sleep {a.opt["bsl"]}')
    main = [[sm((AV if u[0] == 'v' else AZ) + 4*u[1], (AF if u[0] == 'v' else VA) + 4*u[2], U.reg(u), IDX)] for u in order]
    S = Sched(60)
    S.chain(0, later)
    WB = [int(x) for x in a.opt.get('wb', '4_6_4').split('_')]; RB = int(a.opt.get('rb', 1)); FS = int(a.opt.get('fs', 3))
    for j, (done, need) in enumerate(((9 + ALT, 30), (19, 40), (29, 40 + 2*ZE))):
        d = AV + 4*j
        g = S.chain(done + FS, [f'v_permlane32_swap_b32 v{d}, v{d+2}', f'v_permlane32_swap_b32 v{d+1}, v{d+3}', f'v_add_f32 v{d}, v{d}, v{d+2}',
               f'v_add_f32 v{d+1}, v{d+1}, v{d+3}', f'v_cvt_pk_bf16_f32 v{d}, v{d}, v{d+1}', (f'ds_write_b32 v{VIW3}, v{d} offset:{j*1024}', 1),
               (lambda: wait_writes(a), WB[j]), 's_barrier'])
        S.chain(g + RB, [f'ds_read_b64_tr_b16 {vr(VA + 4*u + 2*i, 2)}, v{VIR + i} offset:{u*512}' for u in (2*j, 2*j + 1) for i in range(2)], deadline=need - 2)
    def pk(d0, d1, P): return [f'v_cvt_pk_bf16_f32 v{d0}, v{AZ+4*P}, v{AZ+4*P+1}', f'v_cvt_pk_bf16_f32 v{d1}, v{AZ+4*P+2}, v{AZ+4*P+3}']
    def sw(p): return [f'v_permlane16_swap_b32 v{p}, v{p+1}', f'v_permlane16_swap_b32 v{p+2}, v{p+3}']
    def st(p, grp): return f'buffer_store_dwordx4 {vr(p,4)}, v{VZ4+grp}, s[{WS}:{WS+3}], s{S_BASE} offen sc1'
    fin = {j: max(p for p, u in enumerate(order) if u[:2] == ('o', j)) for j in range(5)}
    g = S.chain(fin[0] + 3, pk(PK, PK + 2, 0)); g = S.chain(max(g, fin[1] + 3), pk(PK + 1, PK + 3, 1) + sw(PK) + [(st(PK, 0), 1)])
    g = S.chain(max(g, fin[2] + 3), pk(PK + 4, PK + 6, 2)); g = S.chain(max(g, fin[3] + 3), pk(PK + 5, PK + 7, 3) + sw(PK + 4) + [(st(PK + 4, 1), 1)])
    ztail = S.tail; S.tail = []
    U.stage(S, order)
    S.put(24, [lambda: tick(a, 2)])
    tp_put(a, S.put, 0, 60)
    assert not S.tail
    bx = int(a.opt.get('bx', 0))
    def drop(x):
        if callable(x): return False
        if bx & 1 and x.startswith('v_'): return True
        if bx & 2 and x.startswith('ds_read_b128') and f'v{VWL} ' in x: return True
        if bx & 4 and x.startswith('s_barrier'): return True
        if bx & 8 and x.startswith('ds_read_b64_tr'): return True
        if bx & 16 and x.startswith('ds_write'): return True
        return False
    S.side = {g: [x for x in l if not drop(x)] for g, l in S.side.items()}
    interleave2(a, main, S.side)
    for x in ztail[:-1] + pk(PK + 8, PK + 9, 4)[:1] + ztail[-1:] + pk(PK + 8, PK + 9, 4)[1:]: a(x)
    a(f'v_permlane16_swap_b32 v{PK+8}, v{PK+9}')
    a(f'buffer_store_dwordx2 {vr(PK+8,2)}, v{VZ2}, s[{WS}:{WS+3}], s{S_BASE} offen sc1')
    tick(a, 3); tick(a, 4)
    tick_out(a, 7, T)
    flag_store(a, VFL, T, f's{S_STEP}')
    a(f's_add_u32 s{S_STEP}, s{S_STEP}, 1')
    step_base(a, S_BASE, S_STEP)
    a(f's_cmp_lt_u32 s{S_STEP}, 64')
    a('s_cbranch_scc1 L_b_loop')
    a.waitf(vm=0)
    flag_store(a, VFL, T, f's{S_STEP}')
    a('s_branch L_end')

def role_r(a):
    a.c('===== R: next memory columns 16r..16r+15 from all heads =====')
    a(f's_sub_u32 s{S_H}, s{S_ROLE}, {R_R}')
    srd(a, SA, 'mem0', 10240)
    a.waitf(lg=0)
    smark(a, 0)
    VE, VP, VTG, VZ, VVO, VW, VRD, VM, VPF, IDX, T = 2, 4, 5, 7, 8, 10, 11, 12, 13, 14, 16
    EX, PM, ZF, TG, AC, VO, VAN = 24, 40, 44, 52, 56, 64, 6
    a(f"""
    s_and_b32 s40, s{S_SLOT}, {int(a.opt.get('prep', 1)) - 1}
    s_lshl_b32 s40, s40, 2
    s_add_u32 s40, s40, s{S_WAVE}
    s_add_u32 s40, s40, 48
    s_lshl_b32 s40, s40, 14
    v_bfe_u32 v{T}, v{V_LANE}, 3, 1         ; hf
    v_and_b32 v{T+1}, 7, v{V_LANE}          ; i
    v_lshrrev_b32 v{T+2}, 4, v{V_LANE}      ; g
    v_lshrrev_b32 v{T+3}, 5, v{V_LANE}
    v_mul_u32_u24 v{VE}, 768, v{T+3}
    v_and_b32 v{T+3}, 31, v{V_LANE}
    v_lshl_add_u32 v{VE}, v{T+3}, 4, v{VE}
    v_add_u32 v{VE}, s40, v{VE}
    v_add_u32 v{VE+1}, 3072, v{VE}
    v_mul_u32_u24 v{VP}, 1536, v{T+2}
    v_lshl_add_u32 v{VP}, v{T}, 6, v{VP}
    v_lshl_add_u32 v{VP}, v{T+1}, 3, v{VP}
    v_add_u32 v{VP}, s40, v{VP}
    v_and_b32 v{T+3}, 1, v{T+2}
    s_add_u32 s30, s{S_H}, 8
    s_lshl_b32 s30, s30, 14
    s_lshl_b32 s31, s{S_WAVE}, 11
    s_add_u32 s30, s30, s31
    v_lshl_add_u32 v{VZ}, v{V_LANE}, 4, s30
    s_lshl_b32 s30, s{S_H}, 15
    s_lshl_b32 s31, s{S_WAVE}, 13
    s_add_u32 s30, s30, s31
    v_lshl_add_u32 v{VVO}, v{V_LANE}, 4, s30
    v_add_u32 v{VVO+1}, 4096, v{VVO}
    v_lshlrev_b32 v{VW}, 8, v{T+3}
    v_lshrrev_b32 v{T+3}, 5, v{V_LANE}
    v_lshl_add_u32 v{VW}, v{T+3}, 7, v{VW}
    v_and_b32 v{T+3}, 15, v{V_LANE}
    v_lshl_add_u32 v{VW}, v{T+3}, 2, v{VW}
    s_lshl_b32 s30, s{S_WAVE}, 9
    v_add_u32 v{VW}, s30, v{VW}
    v_bfe_u32 v{T}, v{V_LANE}, 2, 3
    v_and_b32 v{T+1}, 3, v{V_LANE}
    v_lshrrev_b32 v{T+2}, 5, v{V_LANE}
    v_lshl_add_u32 v{T+1}, v{T+1}, 1, v{T+2}
    v_lshlrev_b32 v{VRD}, 6, v{T}
    v_lshl_add_u32 v{VRD}, v{T+1}, 3, v{VRD}
    s_lshl_b32 s30, s{S_H}, 8
    s_cmp_ge_u32 s{S_H}, 32
    s_cselect_b32 s31, 8192, 0
    s_add_u32 s30, s30, s31
    v_lshl_add_u32 v{VM}, v{V_LANE}, 2, s30
    v_mul_u32_u24 v{T}, 1280, v{T}
    v_lshl_add_u32 v{T}, v{T+1}, 2, v{T}
    s_lshl_b32 s30, s{S_H}, 5
    buffer_load_dword v{T+4}, v{T}, s[{SA}:{SA+3}], s30 offen
    s_mul_i32 s30, s{S_H}, 6554
    s_lshr_b32 s30, s30, 16
    s_lshl_b32 s30, s30, 2
    s_lshl_b32 s31, s{S_WAVE}, 10
    s_add_u32 s30, s30, s31
    s_add_u32 s30, s30, {flag_off(R_VO)}
    v_and_b32 v{T}, 7, v{V_LANE}
    v_lshl_add_u32 v{VPF}, v{T}, 7, s30
    v_and_b32 v{IDX}, 8, v{V_LANE}
    v_cmp_eq_u32 vcc, 0, v{IDX}
    v_mov_b32 v{IDX}, 0xeeee
    v_mov_b32 v{IDX+1}, 0x4444
    v_cndmask_b32 v{IDX}, v{IDX}, v{IDX+1}, vcc
    v_mov_b32 v{T+5}, -1
    """)
    assert all((r * 6554) >> 16 == r // 10 for r in range(40))
    ONE = VTG
    a(f"""
    v_mov_b32 v{ONE}, -1
    s_cmp_lt_u32 s{S_WAVE}, 2
    s_cselect_b64 vcc, -1, 0
    v_cndmask_b32 v{T+4}, v{ONE}, v{T+4}, vcc
    s_lshr_b32 s30, s{S_WAVE}, 1
    s_lshl_b32 s30, s30, 20
    s_and_b32 s31, s{S_WAVE}, 1
    s_lshl_b32 s31, s31, 13
    s_add_u32 s30, s30, s31
    buffer_store_dword v{T+4}, v{VM}, s[{WS}:{WS+3}], s30 offen sc1
    """)
    REP = int(a.opt.get('rep', 4)); VM2 = 100
    for c in range(1, REP):
        a(f'v_add_u32 v{VM2+c-1}, {2*c * 16384}, v{VM}')
        a(f'buffer_store_dword v{T+4}, v{VM2+c-1}, s[{WS}:{WS+3}], s30 offen sc1')
    ON4 = 96; VMW = 103
    assert REP == 4
    a(f's_lshl_b32 s30, s{S_WAVE}, 15'); a(f'v_add_u32 v{VMW}, s30, v{VM}')
    for i in range(4): a(f'v_mov_b32 v{ON4+i}, -1')
    def zclear(sreg):
        for i in range(2): a(f'buffer_store_dwordx4 {vr(ON4,4)}, v{VZ}, s[{WS}:{WS+3}], s{sreg} offen offset:{i*1024} sc1')
    for p in (0, 8192): a(f's_mov_b32 s30, {p}'); zclear(30)
    calibrate(a, T)
    smark(a, 2)
    arrive(a, T)
    wait_all_arrived(a, T)
    smark(a, 1)
    smark_out(a, T, 3)
    a(f's_mov_b32 s{S_STEP}, 0'); a(f's_mov_b32 s57, {64 if a.opt.get("noflag") else 0}'); a(f's_mov_b32 s50, {VO_BASE}'); a('s_mov_b32 s51, 0')
    a.label('L_r_loop')
    step_base(a, S_B2, S_STEP, 2)
    a(f's_cmp_lt_u32 s{S_STEP}, 62'); a(f's_cselect_b32 s{S_B2}, s{S_B2}, {OOB}')
    a(f's_mov_b32 s52, s{S_B2}')
    step_base(a, S_BASE, S_STEP)
    step_base(a, S_B2, S_STEP, 1)
    ok = a.lab('rok'); lp = a.lab('rpl')
    a(f's_cmp_gt_u32 s57, s{S_STEP}'); a(f's_cbranch_scc1 {ok}')
    a('s_mov_b32 s31, 0')
    a.label(lp)
    a(f"""
    buffer_load_dword v{T}, v{VPF}, s[{WS}:{WS+3}], 0 offen sc1
    s_add_u32 s31, s31, 1
    s_cmp_gt_u32 s31, {SPIN_MAX}
    s_cbranch_scc1 L_abort
    v_min_u32_dpp v{T}, v{T}, v{T} row_ror:4 row_mask:0xf bank_mask:0xf
    v_min_u32_dpp v{T}, v{T}, v{T} row_ror:2 row_mask:0xf bank_mask:0xf
    v_min_u32_dpp v{T}, v{T}, v{T} row_ror:1 row_mask:0xf bank_mask:0xf
    v_readfirstlane_b32 s57, v{T}
    s_cmp_le_u32 s57, s{S_STEP}
    s_cbranch_scc1 {lp}
    """)
    a.label(ok)
    for k in range(8):
        a(f'buffer_load_dwordx4 {vr(VO + 4*k, 4)}, v{VVO + k // 4}, s[{WS}:{WS+3}], s50 offen offset:{(k % 4) * 1024} sc1')
    for i in range(4): a(f'v_mov_b32 v{AC+i}, 0')
    a(f'v_add_u32 v{T+2}, s51, v{VW}'); a(f'v_add_u32 v{T+3}, s51, v{VRD}')
    tick(a, 6)
    a(f'buffer_store_dword v{ONE}, v{VMW}, s[{WS}:{WS+3}], s52 offen sc1')
    zclear(S_B2)
    ldE = [f'buffer_load_dwordx4 {vr(EX + 4*u, 4)}, v{VE + u // 2}, s[{WS}:{WS+3}], s{S_BASE} offen offset:{(u % 2) * 1536} sc1' for u in range(4)]
    ldZ = [f'buffer_load_dwordx4 {vr(ZF + 4*i, 4)}, v{VZ}, s[{WS}:{WS+3}], s{S_BASE} offen offset:{i*1024} sc1' for i in range(2)]
    ldL = [f'buffer_load_dwordx2 {vr(PM + 2*i, 2)}, v{VP}, s[{WS}:{WS+3}], s{S_BASE} offen offset:{512 + 768*i} sc1' for i in range(2)]
    def mx(e): a(f'v_max3_u32 v{T}, v{T}, v{e}, v{e+1}'); a(f'v_max3_u32 v{T+1}, v{T+1}, v{e+2}, v{e+3}')
    lp, go = a.lab('rq'), a.lab('rgo')
    poll(a, ldZ, range(ZF, ZF + 8), T, 'pz')
    tick(a, 0)
    a.vm = []; a.label(lp)
    for x in ldL + ldE: a(x)
    a('s_add_u32 s31, s31, 1'); a(f's_cmp_gt_u32 s31, {SPIN_MAX}'); a.branch('s_cbranch_scc1 L_abort', nofence=True)
    a(sm(AC, PM, ZF, IDX))
    a(f'v_max_u32 v{T}, v{PM}, v{PM+1}'); a(f'v_max_u32 v{T+1}, v{PM+2}, v{PM+3}')
    for u in range(4):
        a(sm(AC, EX + 4*u, VO + 8*u, IDX)); mx(EX + 4*u)
    a(f'v_max_u32 v{T}, v{T}, v{T+1}')
    a(f'v_cmp_eq_u32 vcc, -1, v{T}')
    assert not a.vm
    keep = list(a.hist)
    a.branch(f's_cbranch_vccz {go}', nofence=True)
    for i in range(4): a(f'v_mov_b32 v{AC+i}, 0')
    if a.opt.get('ts'): a('s_add_u32 s31, s31, 1000')
    a(f's_branch {lp}')
    a.label(go, fresh=True)
    a.hist = keep + [Ins('s_nop 0')]
    tick(a, 2)
    if a.opt.get('ts'): a('s_mov_b32 s90, s31')
    a(f"""
    v_permlane32_swap_b32 v{AC}, v{AC+2}
    v_permlane32_swap_b32 v{AC+1}, v{AC+3}
    v_add_f32 v{AC}, v{AC}, v{AC+2}
    v_add_f32 v{AC+1}, v{AC+1}, v{AC+3}
    ds_write2_b32 v{T+2}, v{AC}, v{AC+1} offset0:0 offset1:16
    """)
    a.waitf(lg=0)
    a('s_barrier')
    tick(a, 3)
    a(f"""
    ds_read2_b64 {vr(EX,4)}, v{T+3} offset0:0 offset1:64
    ds_read2_b64 {vr(EX+4,4)}, v{T+3} offset0:128 offset1:192
    v_pk_add_f32 {vr(EX,2)}, {vr(EX,2)}, {vr(EX+2,2)}
    v_pk_add_f32 {vr(EX+4,2)}, {vr(EX+4,2)}, {vr(EX+6,2)}
    v_pk_add_f32 {vr(EX,2)}, {vr(EX,2)}, {vr(EX+4,2)}
    v_cvt_pk_bf16_f32 v{EX}, v{EX}, v{EX+1}
    buffer_store_dword v{EX}, v{VMW}, s[{WS}:{WS+3}], s{S_B2} offen sc1
    """)
    tick(a, 4); tick_out(a, 7, T)
    a(f"""
    s_xor_b32 s51, s51, 2048
    s_add_u32 s50, s50, {0 if a.opt.get('vohot') else 40*32768}
    s_add_u32 s{S_STEP}, s{S_STEP}, 1
    s_cmp_lt_u32 s{S_STEP}, 63
    s_cbranch_scc1 L_r_loop
    """)
    a.waitf(vm=0)
    a('s_branch L_end')

def role_c(a):
    a.c('===== C: q, k of the memory rows; scores and softmax of memory rows and segment rows =====')
    a(f's_mov_b32 s{S_H}, s{S_ROLE}')
    srd(a, SA, 'Wq', 640 * 12288); srd(a, SB, 'Wk', 640 * 12288)
    a.waitf(lg=0)
    smark(a, 0)
    VG, VWL, VRD, IDX, VIW, VIW3, VIR, VKX, A0, A1, A2, A3, VFL, T = 2, 7, 8, 9, 11, 12, 13, 14, 15, 16, 17, 18, 19, 20
    AF, AQ, AK, STG, SBF, Y, VT0, VT1, VPA, VWU = 24, 64, 76, 88, 112, 136, 140, 141, 142, 143
    assert int(a.opt.get('prep', 1)) == 1
    VZERO = 10
    assert VPA < WORK
    a(f"""
    s_lshr_b32 s43, s{S_H}, 3
    s_add_u32 s43, s43, 48
    s_lshl_b32 s43, s43, 14
    s_and_b32 s30, s{S_H}, 7
    s_mul_i32 s30, s30, 768
    s_add_u32 s43, s43, s30
    """)
    PREP = int(a.opt.get('prep', 1))
    def clears():
        for i in range(4): a(f'v_mov_b32 v{140+i}, -1')
        a(f"""
        v_lshl_add_u32 v136, v{V_LANE}, 4, s43
        s_lshr_b32 s30, s{S_WAVE}, 1
        s_lshl_b32 s30, s30, 20
        s_and_b32 s31, s{S_WAVE}, 1
        s_lshl_b32 s31, s31, 13
        s_add_u32 s30, s30, s31
        s_mov_b32 exec_hi, 0xffff
        """)
        for c in range(PREP):
            a(f'buffer_store_dwordx4 v[140:143], v136, s[{WS}:{WS+3}], s30 offen sc1'); a(f's_add_u32 s30, s30, {4*16384}')
        a('s_mov_b64 exec, -1')
    order = [('q', j, t) for t in range(10) for j in range(3)] + [('k', j, t) for j in range(3) for t in range(10)]
    U = Units(order, {4, 9, 14, 18, 22, 26, 30, 34, 38, 42, 46, 50, 54, 58}, STG, VWL)
    HB = WORK - 8 * NL; hold = U.hold(HB)
    a(f's_mul_i32 s41, s{S_H}, 384')
    load_weights(a, [WMat(SA, 12288, 24, 20, 2, True, etile_sreg, lambda j, ks: hold(('q', j, ks >> 1)) + 4 * (ks & 1), 3),
                     WMat(SB, 12288, 24, 20, 2, True, etile_sreg, lambda j, ks: hold(('k', j, ks >> 1)) + 4 * (ks & 1), 3)], 2, sbase=[41, 41], clears=clears, vc=138)
    h_setup(a, VG, VWL, VRD, IDX)
    U.park(a, HB)
    a(f"""
    v_mov_b32 v{VZERO}, 0
    v_and_b32 v{T}, 15, v{V_LANE}
    v_lshrrev_b32 v{T+1}, 4, v{V_LANE}
    v_lshrrev_b32 v{T+2}, 2, v{T}
    v_xor_b32 v{T+3}, v{T+2}, v{T+1}
    v_lshlrev_b32 v{T+2}, 5, v{T}
    v_lshl_add_u32 v{T+2}, v{T+3}, 3, v{T+2}
    s_lshl_b32 s30, s{S_WAVE}, 10
    s_add_u32 s30, s30, {L_QI}
    v_add_u32 v{VIW}, s30, v{T+2}
    s_lshl_b32 s30, s{S_WAVE}, 9
    s_add_u32 s30, s30, {L_QI + 4096}
    v_add_u32 v{VIW3}, s30, v{T+2}
    v_xor_b32 v{VIR}, v{V_LANE}, v{T+1}
    v_lshlrev_b32 v{VIR}, 3, v{VIR}
    v_add_u32 v{VIR}, {L_QI}, v{VIR}
    s_lshl_b32 s30, s{S_WAVE}, 10
    v_add_u32 v{VT0}, s30, v{VIR}
    s_lshl_b32 s30, s{S_WAVE}, 9
    v_add_u32 v{VT1}, s30, v{VIR}
    s_mov_b32 s44, {f32(CSC)}
    s_mov_b32 s45, {L_KX}
    s_mov_b32 s57, {64 if a.opt.get('noflag') else 0}
    s_mov_b32 s{S_STEP}, 0
    s_mul_i32 s50, s{S_H}, 12288
    """)
    flag_addr(a, VFL)
    smark(a, 1)
    wait_all_arrived(a, T)
    smark(a, 2)
    smark_out(a, T, 3)
    step_base(a, S_BASE, S_STEP)
    a(f's_cmp_eq_u32 s{S_WAVE}, 1'); a('s_cbranch_scc1 L_c_d')
    a(f's_cmp_ge_u32 s{S_WAVE}, 2'); a('s_cbranch_scc1 L_c_x')

    def kx_dma(sbuf):
        for f in range(12):
            if f % 4 == 0: a(f's_add_u32 m0, s{sbuf}, {f*1024}'); a(f's_add_u32 s34, s50, {f*1024}')
            a(f'buffer_load_dwordx4 v{A0}, s[{WS}:{WS+3}], s34 offen offset:{(f % 4)*1024} sc1 lds')

    QF, Q3, KF = SBF, SBF + 4, SBF + 12
    def trq(d, ks, off): return [f'ds_read_b64_tr_b16 {vr(d + 2*i, 2)}, v{VIR} offset:{off + ks*1024 + i*512}' for i in range(2)]
    def img(acc, j, off):
        c = acc + 4*j
        return [f'v_cvt_pk_bf16_f32 v{c}, v{c}, v{c+1}', f'v_cvt_pk_bf16_f32 v{c+1}, v{c+2}, v{c+3}',
                f'ds_write_b64 v{VIW3 if j == 2 else VIW}, {vr(c,2)} offset:{off + (512 if j == 1 else 0)}']
    def passes(kind):
        for i in range(24): a(f'v_mov_b32 v{AQ+i}, 0')
        for i in (0, 1, 4, 5): a(f'v_mov_b32 v{Q3+i}, 0')
        for n in range(3): [a(x) for x in U.fetch(n)]
        a(f"""
        s_lshl_b32 s30, s{S_WAVE}, 10
        s_add_u32 s31, s30, s45
        v_lshl_add_u32 v{VKX}, v{V_LANE}, 4, s31
        s_xor_b32 s46, s45, {L_KX ^ (L_KX + 12288)}
        s_add_u32 s31, s30, s46
        v_lshl_add_u32 v{VPA}, v{V_LANE}, 4, s31
        """)
        later = gather_mem(a, VG, VRD, AF, T)
        main = [[sm((AQ if u[0] == 'q' else AK) + 4*u[1], AF + 4*u[2], U.reg(u), IDX)] for u in order]
        S = Sched(60)
        S.chain(0, later)
        S.chain(12, [f'ds_read_b128 {vr(KF,4)}, v{VKX}', (f'ds_read_b128 {vr(KF+4,4)}, v{VKX} offset:4096', 1), (f'ds_read_b128 {vr(KF+8,4)}, v{VKX} offset:8192', 1)])
        if kind == 'd':
            S.chain(5, [f'buffer_load_dword v{T+2}, v{VWU}, s[{WS}:{WS+3}], s49 offen sc1', (f'buffer_load_dword v{T+3}, v{VWU}, s[{WS}:{WS+3}], s48 offen sc1', 2)])
        if kind == 'm':
            S.group(6, ['s_mov_b32 exec_hi, 0xff', f'buffer_store_dwordx4 {vr(Y,4)}, v{A2}, s[{WS}:{WS+3}], s{S_B2} offen sc1', 's_mov_b64 exec, -1'])
        if kind == 'x':
            S.chain(5, [f'buffer_load_dword v{T+2}, v{VWU}, s[{WS}:{WS+3}], s50 offen sc1'])
        q = [img(AQ, j, 0) for j in range(3)]
        S.put(31, q[0][:2]); S.put(32, q[0][2:] + q[1][:2]); S.put(33, q[1][2:] + q[2][:2]); S.put(34, q[2][2:])
        g = S.chain(35, [f'ds_read_b64_tr_b16 {vr(QF,2)}, v{VT0}', f'ds_read_b64_tr_b16 {vr(QF+2,2)}, v{VT0} offset:512',
                         f'ds_read_b64_tr_b16 {vr(Q3+2,2)}, v{VT1} offset:4096'])
        PS = int(a.opt.get('ps', 41))
        S.put(PS, [f'v_mfma_f32_16x16x32_bf16 {vr(AQ,4)}, {vr(KF,4)}, {vr(QF,4)}, 0',
                 f'v_mfma_f32_16x16x32_bf16 {vr(AQ+4,4)}, {vr(KF+4,4)}, {vr(QF,4)}, 0',
                 img(AK, 0, 6144)[0],
                 f'v_mfma_f32_16x16x32_bf16 {vr(AQ,4)}, {vr(KF+8,4)}, {vr(Q3+2,4)}, {vr(AQ,4)}',
                 img(AK, 0, 6144)[1],
                 f'v_mfma_f32_16x16x32_bf16 {vr(AQ+4,4)}, {vr(KF+8,4)}, {vr(Q3,4)}, {vr(AQ+4,4)}'])
        S.chain(PS + 1, img(AK, 0, 6144)[2:])
        QE = int(a.opt.get('qe', 1))
        if QE: S.put(PS - 1, [lambda: wait_writes(a), 's_barrier'])
        fo = []
        for jt in range(2):
            for c in range(2):
                x0, x1 = AQ + 4*jt + c, AQ + 4*jt + 2 + c
                fo += [f'v_add_f32_dpp v{Y+2*jt+c}, v{x0}, v{x0} row_ror:8 row_mask:0xf bank_mask:0x3',
                       f'v_add_f32_dpp v{Y+2*jt+c}, v{x1}, v{x1} row_ror:8 row_mask:0xf bank_mask:0xc']
        fo = fo[0::2] + fo[1::2]
        g = S.chain(PS + 3, fo)
        l = img(AK, 1, 6144)
        S.put(g + 1, ([f'ds_write_b128 v{VPA}, {vr(Y,4)}'] if kind != 'm' else []) + l[:1])
        g = S.chain(g + 2, [l[1], (l[2], 1), (lambda: wait_writes(a), int(a.opt.get('cwb', 4))), 's_barrier', lambda: tick(a, 2)], deadline=59)
        U.stage(S, order)
        if kind == 'm' and QE:
            S.chain(PS + 2, [(x, 1) for ks in range(6) for x in trq(SBF + 4*ks, ks, 0)], deadline=58)
            S.chain(g + int(a.opt.get('crb', 1)), [f'ds_read_b128 {vr(AQ + 4*(w-1), 4)}, v{VPA} offset:{w*1024}' for w in (1, 2, 3)] + trq(AF, 0, 6144) + trq(AF + 4, 1, 6144))
        elif kind == 'm':
            S.chain(g + int(a.opt.get('crb', 1)), [f'ds_read_b128 {vr(AQ + 4*(w-1), 4)}, v{VPA} offset:{w*1024}' for w in (1, 2, 3)] + trq(AF, 0, 6144) + trq(SBF, 0, 0) + trq(AF + 4, 1, 6144) + trq(SBF + 4, 1, 0))
        tp_put(a, S.put, 0, 60)
        interleave2(a, main, S.side)
        for x in S.tail: a(x)
        for x in img(AK, 2, 6144): a(x)
    def tpk(p):
        if a.opt.get('tp'):
            for slot, q in zip((0, 2, 3, 5, 6), a.opt['tp'].split('_')):
                if int(q) == p: tick(a, slot, True)
    def bar2():
        wait_writes(a)
        a('s_barrier')
        tick(a, 3); tpk(61)
    def next_step(lab, fin=None):
        a(f"""
        s_mov_b32 s45, s46
        s_add_u32 s{S_STEP}, s{S_STEP}, 1
        """)
        step_base(a, S_BASE, S_STEP)
        a(f's_cmp_lt_u32 s{S_STEP}, 64')
        a(f's_cbranch_scc1 {lab}')
        a.waitf(vm=0)
        if fin: fin()
        a('s_branch L_end')

    a(f"""
    v_and_b32 v{T}, 15, v{V_LANE}
    v_lshrrev_b32 v{T+1}, 5, v{V_LANE}
    v_bfe_u32 v{T+3}, v{V_LANE}, 4, 1
    v_lshlrev_b32 v{A0}, 4, v{T}
    v_lshl_add_u32 v{A0}, v{T+1}, 8, v{A0}
    v_lshl_add_u32 v{A0}, v{T+3}, 3, v{A0}
    v_add_u32 v{A0}, s43, v{A0}
    v_and_b32 v{T+2}, 7, v{V_LANE}
    v_lshlrev_b32 v{A1}, 6, v{T+3}
    v_lshl_add_u32 v{A1}, v{T+2}, 3, v{A1}
    v_lshl_add_u32 v{A1}, v{T+1}, 2, v{A1}
    v_add_u32 v{A1}, s43, v{A1}
    """)
    a(f'v_lshl_add_u32 v{A2}, v{V_LANE}, 4, s43')
    flag_store(a, VFL, T, 64)
    a.label('L_c_m_loop')
    step_base(a, S_B2, S_STEP, 2)
    a(f's_cmp_lt_u32 s{S_STEP}, 62'); a(f's_cselect_b32 s{S_B2}, s{S_B2}, {OOB}')
    for i in range(4): a(f'v_mov_b32 v{Y+i}, -1')
    passes('m')
    tpk(60)
    MX, LX, M2, TT = T, T + 1, T + 2, T + 3
    mr = trq(AF + 8, 2, 6144) + trq(SBF + 8, 2, 0) + trq(AF + 12, 3, 6144) + trq(SBF + 12, 3, 0) + trq(SBF + 16, 4, 0) + trq(SBF + 20, 5, 0)
    if int(a.opt.get('qe', 1)): mr = trq(AF + 8, 2, 6144) + trq(AF + 12, 3, 6144)
    nm = int(a.opt.get('mr', 12))
    for x in mr[:nm]: a(x)
    sx = []
    if int(a.opt.get('pk', 1)):
        for d, x in ((Y, AQ), (AQ + 4, AQ + 8), (Y, AQ + 4)):
            for i in (0, 2): sx.append(f'v_pk_add_f32 {vr(d+i,2)}, {vr(d+i,2)}, {vr(x+i,2)}')
    else:
        for i in range(4): sx.append(f'v_add_f32 v{Y+i}, v{Y+i}, v{AQ+i}')
        for i in range(4): sx.append(f'v_add_f32 v{AQ+4+i}, v{AQ+4+i}, v{AQ+8+i}')
        for i in range(4): sx.append(f'v_add_f32 v{Y+i}, v{Y+i}, v{AQ+4+i}')
    sx += [f'v_max3_f32 v{MX}, v{Y}, v{Y+1}, v{Y+2}', f'v_max_f32 v{MX}, v{MX}, v{Y+3}',
           f'v_max_f32_dpp v{MX}, v{MX}, v{MX} row_ror:8 row_mask:0xf bank_mask:0xf']
    sx += allred('v_max_f32', MX, TT)
    sx += [f'v_mul_f32 v{M2}, s44, v{MX}']
    sx += [f'v_fma_f32 v{Y+i}, v{Y+i}, s44, -v{M2}' for i in range(4)]
    sx += [f'v_exp_f32 v{Y+i}, v{Y+i}' for i in range(4)]
    sx += [f'v_add_f32 v{LX}, v{Y}, v{Y+1}', f'v_add_f32 v{TT}, v{Y+2}, v{Y+3}', f'v_add_f32 v{LX}, v{LX}, v{TT}',
           f'v_add_f32_dpp v{LX}, v{LX}, v{LX} row_ror:8 row_mask:0xf bank_mask:0xf']
    n0 = int(a.opt.get('sx0', 6))
    for x in sx[:n0]: a(x)
    sx = sx[n0:]
    bar2()
    for x in trq(AF + 16, 4, 6144) + trq(AF + 20, 5, 6144) + mr[nm:]: a(x)
    N = AK
    slots = {int(x): k for k, x in enumerate(a.opt.get('sl', '0_2_4_7_14_15').split('_'))}
    for i, x in enumerate(sx):
        if i in slots:
            ks = slots[i]
            a(f'v_mfma_f32_16x16x32_bf16 {vr(N,4)}, {vr(AF + 4*ks, 4)}, {vr(SBF + 4*ks, 4)}, {vr(N,4) if ks else 0}')
        a(x)
    tpk(62)
    a(f"""
    v_permlane32_swap_b32 v{N}, v{N+2}
    v_permlane32_swap_b32 v{N+1}, v{N+3}
    v_add_f32 v{N}, v{N}, v{N+2}
    v_add_f32 v{N+1}, v{N+1}, v{N+3}
    v_add_f32_dpp v{N}, v{N}, v{N} row_ror:8 row_mask:0xf bank_mask:0xf
    v_add_f32_dpp v{N+1}, v{N+1}, v{N+1} row_ror:8 row_mask:0xf bank_mask:0xf
    v_fma_f32 v{N}, v{N}, s44, -v{M2}
    v_fma_f32 v{N+1}, v{N+1}, s44, -v{M2}
    v_max_f32 v{MX}, v{N}, v{N+1}
    v_cmp_lt_f32 vcc, {f32(float(a.opt.get('thr', 16)))}, v{MX}
    """)
    a._push(Ins('s_cbranch_vccnz L_c_resc')); a.raw('L_c_resc_back:')
    a(f"""
    v_exp_f32 v{N}, v{N}
    v_exp_f32 v{N+1}, v{N+1}
    v_add_f32 v{LX}, v{LX}, v{N}
    v_add_f32 v{M2}, v{LX}, v{N+1}
    v_add_f32 v{TT}, v{LX}, v{N+1}
    v_permlane32_swap_b32 v{M2}, v{TT}
    v_add_f32 v{MX}, v{M2}, v{TT}
    v_add_f32 v{TT}, v{M2}, v{TT}
    v_permlane16_swap_b32 v{MX}, v{TT}
    v_add_f32 v{M2}, v{MX}, v{TT}
    v_rcp_f32 v{M2}, v{M2}
    v_pk_mul_f32 {vr(N,2)}, {vr(N,2)}, {vr(M2,2)} op_sel_hi:[1,0]
    v_pk_mul_f32 {vr(Y,2)}, {vr(Y,2)}, {vr(M2,2)} op_sel_hi:[1,0]
    v_pk_mul_f32 {vr(Y+2,2)}, {vr(Y+2,2)}, {vr(M2,2)} op_sel_hi:[1,0]
    v_cvt_pk_bf16_f32 v{N}, v{N}, v{N+1}
    v_cvt_pk_bf16_f32 v{Y}, v{Y}, v{Y+1}
    v_cvt_pk_bf16_f32 v{Y+1}, v{Y+2}, v{Y+3}
    buffer_store_dword v{N}, v{A1}, s[{WS}:{WS+3}], s{S_BASE} offen offset:512 sc1
    """)
    if PREP == 4: a(f'buffer_store_dword v{N}, v{A1}, s[{WS}:{WS+3}], s65 offen offset:512 sc1')
    for c in range(PREP): a(f'buffer_store_dwordx2 {vr(Y,2)}, v{A0}, s[{WS}:{WS+3}], s{(S_BASE, 64, 65, 66)[c]} offen sc1')
    tick(a, 4); tick_out(a, 7, T)
    next_step('L_c_m_loop')
    a.saved['L_c_resc'] = ([], [], False); a.label('L_c_resc', fresh=True)
    a(f'v_max_f32 v{MX}, 0, v{MX}')
    for x in allred('v_max_f32', MX, TT): a(x)
    a(f"""
    v_sub_f32 v{N}, v{N}, v{MX}
    v_sub_f32 v{N+1}, v{N+1}, v{MX}
    v_exp_f32 v{MX}, -v{MX}
    v_mul_f32 v{LX}, v{LX}, v{MX}
    v_mul_f32 v{Y}, v{Y}, v{MX}
    v_mul_f32 v{Y+1}, v{Y+1}, v{MX}
    v_mul_f32 v{Y+2}, v{Y+2}, v{MX}
    v_mul_f32 v{Y+3}, v{Y+3}, v{MX}
    s_nop 1
    """)
    a._push(Ins('s_branch L_c_resc_back'))

    a.label('L_c_d', fresh=True)
    a(f"""
    v_lshlrev_b32 v{A0}, 4, v{V_LANE}
    v_add_u32 v{A1}, s43, v{A0}
    v_lshlrev_b32 v{VWU}, 7, v{V_LANE}
    s_add_u32 s50, s50, {QKV_BASE + QKV_SZ}
    s_lshl_b32 s56, s{S_H}, 7
    s_add_u32 s56, s56, {flag_off(R_PJ + 32)}
    """)
    flag_store(a, VFL, T, 64)
    need_flag4(a, 57, S_STEP, 56, T, VZERO)
    kx_dma(45)
    a.label('L_c_d_loop')
    a(f's_add_u32 s50, s50, {32*12288}')
    a(f's_add_u32 s58, s{S_STEP}, 1'); a('s_min_u32 s59, s58, 63')
    a('s_cmp_lt_u32 s58, 64'); a(f's_cselect_b32 s50, s50, {OOB}')
    a('s_cmp_gt_u32 s57, s59'); a(f's_cselect_b32 s49, s50, {OOB}')
    a('s_add_u32 s48, s49, 4096')
    passes('d'); bar2()
    a.waitf(vm=0)
    a('s_add_u32 s58, s59, 1'); a('s_min_u32 s58, s58, 63')
    need_flag4(a, 57, 59, 56, T, VZERO, want=58)
    if int(a.opt.get('kxd', 0)): a(f's_sleep {a.opt["kxd"]}')
    kx_dma(46)
    tick(a, 4); tick_out(a, 7, T)
    next_step('L_c_d_loop')

    a.label('L_c_x', fresh=True)
    a(f"""
    s_and_b32 s47, s{S_WAVE}, 1
    s_lshl_b32 s30, s47, 12
    v_lshl_add_u32 v{A0}, v{V_LANE}, 4, s30
    s_lshl_b32 s30, s47, 3
    s_add_u32 s30, s30, 8192
    v_lshl_add_u32 v{A1}, v{V_LANE}, 4, s30
    s_lshl_b32 s30, s47, 10
    v_lshl_add_u32 v{A2}, v{V_LANE}, 4, s30
    v_and_b32 v{T}, 15, v{V_LANE}
    v_lshrrev_b32 v{T+1}, 4, v{V_LANE}
    s_lshl_b32 s30, s47, 8
    s_add_u32 s30, s30, 2048
    v_lshl_add_u32 v{A3}, v{T}, 4, s30
    v_lshl_add_u32 v{A3}, v{T+1}, 2, v{A3}
    s_lshl_b32 s30, s47, 4
    v_add_u32 v{T}, s30, v{T}
    v_lshlrev_b32 v{T+1}, 2, v{T+1}
    v_sub_u32 v{T}, v{T}, v{T+1}
    s_lshl_b32 s30, s47, 12
    v_lshl_add_u32 v{VWU}, v{V_LANE}, 7, s30
    v_cmp_gt_u32 vcc, 32, v{V_LANE}
    v_lshlrev_b32 v{T+1}, 7, v{V_LANE}
    v_add_u32 v{T+1}, 4096, v{T+1}
    v_cndmask_b32 v{VWU}, v{T+1}, v{VWU}, vcc
    s_add_u32 s50, s50, {QKV_BASE}
    s_lshl_b32 s56, s{S_H}, 7
    s_add_u32 s56, s56, {flag_off(R_PJ)}
    s_mul_i32 s51, s{S_H}, 2560
    s_add_u32 s51, s51, {PX_BASE}
    """)
    for jt in range(2):
        for r in range(4): a(f'v_cmp_le_i32 s[{64+2*(4*jt+r)}:{65+2*(4*jt+r)}], {16*jt+r}, v{T}')
    a.label('L_c_x_loop')
    need_flag4(a, 57, S_STEP, 56, T, VZERO)
    passes('x')
    xl = [f'buffer_load_dwordx4 {vr(SBF + 4*ks, 4)}, v{A0}, s[{WS}:{WS+3}], s50 offen offset:{ks*1024} sc1' for ks in range(4)]
    nx = int(a.opt.get('xl', 0))
    for x in xl[:nx]: a(x)
    bar2()
    for x in xl[nx:]: a(x)
    for t in range(4): a(f'buffer_load_dwordx2 {vr(SBF + 16 + 2*t, 2)}, v{A1}, s[{WS}:{WS+3}], s50 offen offset:{t*1024} sc1')
    X = AQ; N = AQ + 8
    a(f'v_lshl_add_u32 v{T}, v{V_LANE}, 4, s45'); a(f'v_add_u32 v{T+1}, 8, v{T}')
    ops = []
    for ks in range(6):
        for jt in range(3):
            b = AF + 4 * (len(ops) % 10)
            if jt == 2: rd = [f'ds_read_b64_tr_b16 {vr(b + 2*i, 2)}, v{VIR} offset:{6144 + ks*1024 + i*512}' for i in range(2)]
            elif ks < 4: rd = [f'ds_read_b128 {vr(b,4)}, v{T} offset:{jt*4096 + ks*1024}']
            else: rd = [f'ds_read2st64_b64 {vr(b,4)}, v{T+jt} offset0:{16 + 4*(ks-4)} offset1:{18 + 4*(ks-4)}']
            c = vr(X + 4*jt, 4)
            ops.append((rd, f'v_mfma_f32_16x16x32_bf16 {c}, {vr(b,4)}, {vr(SBF + 4*ks, 4)}, {c if ks else 0}'))
    for i in range(9): [a(x) for x in ops[i][0]]
    for i in range(18):
        a(ops[i][1])
        if i + 9 < 18: [a(x) for x in ops[i + 9][0]]
    MX, SM, TT = T, T + 1, T + 3
    a(f'v_mov_b32 v{TT}, 0xf149f2ca')
    a(f"""
    v_permlane32_swap_b32 v{N}, v{N+2}
    v_permlane32_swap_b32 v{N+1}, v{N+3}
    v_add_f32 v{N}, v{N}, v{N+2}
    v_add_f32 v{N+1}, v{N+1}, v{N+3}
    """)
    for i in range(8): a(f'v_cndmask_b32 v{X+i}, v{TT}, v{X+i}, s[{64+2*i}:{65+2*i}]')
    a(f"""
    v_max3_f32 v{MX}, v{X}, v{X+1}, v{X+2}
    v_max3_f32 v{SM}, v{X+3}, v{X+4}, v{X+5}
    v_max3_f32 v{MX}, v{MX}, v{X+6}, v{X+7}
    v_max3_f32 v{SM}, v{SM}, v{X+8}, v{X+9}
    v_max_f32 v{MX}, v{MX}, v{SM}
    """)
    for x in allred('v_max_f32', MX, TT): a(x)
    a(f'v_mul_f32 v{MX}, s44, v{MX}')
    for i in range(10): a(f'v_fma_f32 v{X+i}, v{X+i}, s44, -v{MX}')
    for i in range(10): a(f'v_exp_f32 v{X+i}, v{X+i}')
    a(f'v_add_f32 v{SM}, v{X}, v{X+1}'); a(f'v_add_f32 v{TT}, v{X+2}, v{X+3}')
    for i in range(4, 10, 2):
        a(f'v_add_f32 v{SM}, v{SM}, v{X+i}'); a(f'v_add_f32 v{TT}, v{TT}, v{X+i+1}')
    a(f'v_add_f32 v{SM}, v{SM}, v{TT}')
    for x in allred('v_add_f32', SM, TT): a(x)
    a(f'v_rcp_f32 v{SM}, v{SM}')
    for i in range(10): a(f'v_mul_f32 v{X+i}, v{X+i}, v{SM}')
    for i in range(5): a(f'v_cvt_pk_bf16_f32 v{AK+i}, v{X+2*i}, v{X+2*i+1}')
    a(f'buffer_store_dwordx4 {vr(AK,4)}, v{A2}, s[{WS}:{WS+3}], s51 offen sc1')
    a(f'buffer_store_dword v{AK+4}, v{A3}, s[{WS}:{WS+3}], s51 offen sc1')
    tick(a, 4); tick_out(a, 7, T)
    a(f's_add_u32 s50, s50, {32*12288}'); a(f's_add_u32 s51, s51, {32*2560}'); a(f's_add_u32 s58, s{S_STEP}, 1')
    flag_store(a, VFL, T, f's{S_STEP}')
    next_step('L_c_x_loop', lambda: flag_store(a, VFL, T, 64))
```

```python
from emit import *
MB = 1 << 20
NAME = 'gated_mix__memory_aug_recurrent_mem_tr__ssm_conv_s5__prompt'
WS_BYTES = 256 * MB
QKV_BASE = 64 * MB; QKV_SZ = 24 * MB
VO_BASE = 136 * MB
PX_BASE = 216 * MB
HT_BASE = 222 * MB
BB_BASE = 228 * MB
G_BASE = 234 * MB
FL_BASE = 235 * MB
TS_BASE = 236 * MB
OOB = 0x7ff00000
KA = dict(x=0, mem0=8, Wq=16, Wk=24, Wv=32, Wo=40, lre=64, lim=72, Bre=80, Bim=88, Cre=96, Cim=104, ldt=112, dsk=120, gw=128, out=136, dbg=144, ws=152)
R_C, R_B, R_R, R_S5A, R_S5B, R_SP, R_PJ, R_VO = 0, 32, 64, 104, 114, 124, 128, 224
S_ROLE, S_WAVE, S_H, S_P2, S_SLOT = 2, 3, 4, 5, 6
WS, SA, SB, SC, DBG = 8, 12, 16, 20, 24
SPIN_MAX = 400000
V_TID, V_LANE = 0, 1

def srd(a, dst, slot, nbytes):
    a(f's_load_dwordx2 s[{dst}:{dst+1}], s[0:1], {KA[slot]}')
    a(f's_mov_b32 s{dst+2}, {nbytes}')
    a(f's_mov_b32 s{dst+3}, 0x20000')

def flag_off(role): return FL_BASE + role * 128

def clear_flag(a, vt):
    a(f'''
    v_mov_b32 v{vt}, 0
    v_lshlrev_b32 v{vt+1}, 2, v{V_LANE}
    s_lshl_b32 s30, s{S_ROLE}, 7
    s_add_u32 s30, s30, {FL_BASE}
    s_mov_b64 exec, 0xffffffff
    buffer_store_dword v{vt}, v{vt+1}, s[{WS}:{WS+3}], s30 offen sc1
    s_mov_b64 exec, -1
    ''')
def count_in(a, vt):
    a(f'''
    s_cmp_eq_u32 s{S_WAVE}, 0
    s_cselect_b32 s30, 0, {OOB}
    v_mov_b32 v{vt}, 0
    v_mov_b32 v{vt+1}, 1
    s_mov_b64 exec, 1
    buffer_atomic_add v{vt+1}, v{vt}, s[{DBG}:{DBG+3}], s30 offen sc1
    s_mov_b64 exec, -1
    ''')
def raise_go(a, vt):
    l = a.lab('rg')
    a(f'v_mov_b32 v{vt+1}, 0'); a('s_mov_b32 s31, 0')
    a.label(l)
    a(f'''
    buffer_load_dword v{vt}, v{vt+1}, s[{DBG}:{DBG+3}], 0 offen sc1
    s_add_u32 s31, s31, 1
    s_cmp_gt_u32 s31, {SPIN_MAX}
    s_cbranch_scc1 L_abort
    s_sleep 6
    v_readfirstlane_b32 s30, v{vt}
    s_cmp_lt_u32 s30, 256
    s_cbranch_scc1 {l}
    s_mov_b64 exec, 1
    buffer_store_dword v{vt}, v{vt+1}, s[{DBG}:{DBG+3}], 0 offen offset:192 sc1
    s_mov_b64 exec, -1
    ''')
def arrive(a, vt):
    clear_flag(a, vt)
    a.waitf(vm=0)
    a('s_barrier')
    count_in(a, vt)

S_PAR = 60
def wait_all_arrived(a, vt):
    l = a.lab('wa')
    a(f'v_mov_b32 v{vt+1}, 0')
    a('s_mov_b32 s31, 0')
    a.label(l)
    a(f'''
    buffer_load_dword v{vt}, v{vt+1}, s[{DBG}:{DBG+3}], 0 offen offset:192 sc1
    s_add_u32 s31, s31, 1
    s_cmp_gt_u32 s31, {SPIN_MAX}
    s_cbranch_scc1 L_abort
    s_sleep 2
    v_readfirstlane_b32 s30, v{vt}
    s_cmp_eq_u32 s30, 0
    s_cbranch_scc1 {l}
    buffer_load_dword v{vt}, v{vt+1}, s[{DBG}:{DBG+3}], 0 offen offset:24 sc1
    buffer_load_dword v{vt+1}, v{vt+1}, s[{DBG}:{DBG+3}], 0 offen offset:28 sc1
    v_readfirstlane_b32 s{S_PAR}, v{vt}
    v_readfirstlane_b32 s30, v{vt+1}
    s_xor_b32 s31, s{S_PAR}, 0xaaaaaaaa
    s_and_b32 s31, s31, s30
    s_bcnt1_i32_b32 s31, s31
    s_lshl_b32 s31, s31, 1
    s_bcnt1_i32_b32 s32, s30
    s_cmp_gt_u32 s31, s32
    s_mov_b32 s31, 0xaaaaaaaa
    s_cselect_b32 s31, 0x55555555, s31
    s_and_b32 s{S_PAR}, s{S_PAR}, s30
    s_andn2_b32 s31, s31, s30
    s_or_b32 s{S_PAR}, s{S_PAR}, s31
    ''')
    if 'par' in a.opt: a(f's_mov_b32 s{S_PAR}, {0x55555555 if int(a.opt["par"]) else 0xaaaaaaaa}')

class WMat:
    def __init__(s, srd, stride, npiece, nks, R, natural, tile_sreg, dest, ntile, pair=False):
        s.pair = pair
        s.srd, s.stride, s.np, s.nks, s.R, s.natural = srd, stride, npiece, nks, R, natural
        s.tile_sreg, s.dest, s.ntile = tile_sreg, dest, ntile
        s.rowb = npiece * 16; s.blk = 8 * s.rowb; s.ni = s.blk // 1024
RING = 163840

def load_weights(a, mats, vt, sbase=None, clears=None, vc=None, last=None, lo=0, hi=RING, pre=0, lo_ts=None):
    t0 = vt; vt += 4
    for m in mats:
        m.va = vt; vt += m.ni
        m.lb = vt; m.sg = vt + 1; vt += 2
        magic = {24: 2731, 80: 820}[m.np]
        assert all((i * magic) >> 16 == i // m.np for i in range(m.ni * 64))
        sh = 0 if m.rowb % 256 == 0 else 1
        a(f's_lshr_b32 s30, s{S_WAVE}, 1')
        a(f's_and_b32 s31, s{S_WAVE}, 1')
        if m.natural:
            a('s_lshl_b32 s30, s30, 4'); a('s_lshl_b32 s31, s31, 2')
        else:
            a('s_lshl_b32 s30, s30, 3'); a('s_lshl_b32 s31, s31, 4')
        a('s_add_u32 s30, s30, s31')
        a(f's_mov_b32 s32, {m.stride}')
        for j in range(m.ni):
            a(f'''
            v_add_u32 v{t0}, {64*j}, v{V_LANE}
            v_mul_u32_u24 v{t0+1}, {magic}, v{t0}
            v_lshrrev_b32 v{t0+1}, 16, v{t0+1}
            v_mul_u32_u24 v{t0+2}, {m.np}, v{t0+1}
            v_sub_u32 v{t0}, v{t0}, v{t0+2}
            v_lshrrev_b32 v{t0+2}, {sh}, v{t0+1}
            v_lshlrev_b32 v{t0+2}, 1, v{t0+2}
            v_xor_b32 v{t0}, v{t0}, v{t0+2}
            ''')
            if m.natural:
                a(f'''
                v_and_b32 v{t0+2}, 4, v{t0+1}
                v_add_u32 v{t0+1}, v{t0+1}, v{t0+2}
                ''')
            a(f'''
            v_add_u32 v{t0+1}, s30, v{t0+1}
            v_mul_lo_u32 v{t0+1}, v{t0+1}, s32
            v_lshl_add_u32 v{m.va+j}, v{t0}, 4, v{t0+1}
            ''')
        if m.pair:
            a(f'''
            v_lshrrev_b32 v{t0}, 4, v{V_LANE}
            v_bfe_u32 v{t0+1}, v{V_LANE}, 2, 1
            v_lshl_add_u32 v{t0}, v{t0}, 1, v{t0+1}
            v_bfe_u32 v{t0+1}, v{V_LANE}, 3, 1
            v_xor_b32 v{m.sg}, v{t0}, v{t0+1}
            v_mul_u32_u24 v{m.lb}, {m.rowb}, v{t0}
            v_and_b32 v{t0}, 3, v{V_LANE}
            v_lshl_add_u32 v{m.lb}, v{t0}, 3, v{m.lb}
            ''')
            continue
        a(f'''
        v_bfe_u32 v{t0}, v{V_LANE}, 2, 3
        v_lshrrev_b32 v{m.sg}, {sh}, v{t0}
        v_mul_u32_u24 v{m.lb}, {m.rowb}, v{t0}
        v_lshrrev_b32 v{t0}, 5, v{V_LANE}
        v_mul_u32_u24 v{t0}, {2*m.blk}, v{t0}
        v_add_u32 v{m.lb}, v{m.lb}, v{t0}
        v_and_b32 v{t0}, 3, v{V_LANE}
        v_lshl_add_u32 v{m.lb}, v{t0}, 3, v{m.lb}
        ''')
    rounds = []
    for mi, m in enumerate(mats):
        for k0 in range(0, m.nks, m.R): rounds.append((mi, m, k0, min(m.R, m.nks - k0)))
    size = [n * 4 * m.blk for (mi, m, k0, n) in rounds]
    off = []; p = lo
    for z in size:
        if p + z > hi: p = lo
        off.append(p); p += z
    def fits(r, lo):
        return all(off[r] + size[r] <= off[q] or off[q] + size[q] <= off[r] for q in range(lo, r))
    def issue(ri):
        mi, m, k0, n = rounds[ri]
        a(f's_mul_i32 s33, s{S_WAVE}, {m.blk}')
        for kl in range(n):
            so = (k0 + kl) * 32 * m.stride
            if sbase is not None and sbase[mi] is not None: a(f's_add_u32 s34, s{sbase[mi]}, {so}')
            else: a(f's_mov_b32 s34, {so}')
            for j in range(m.ni):
                a(f's_add_u32 m0, s33, {off[ri] + kl * 4 * m.blk + j * 1024}')
                a(f'buffer_load_dwordx4 v{m.va+j}, s[{m.srd}:{m.srd+3}], s34 offen lds')
        return n * m.ni
    seq = []
    nxt = 0
    def fill(lo):
        nonlocal nxt
        while nxt < len(rounds) and fits(nxt, lo) and sum(c for r, c in seq if r is None or r >= lo) + rounds[nxt][3] * rounds[nxt][1].ni <= 60 - (pre if lo == 0 else 0):
            seq.append((nxt, issue(nxt))); nxt += 1
            if nxt == 1 and vc is not None:
                if clears: clears()
                clear_flag(a, vc)
    fill(0)
    for ri, (mi, m, k0, n) in enumerate(rounds):
        at = [k for k, (r, c) in enumerate(seq) if r == ri][0]
        a.waitf(vm=sum(c for r, c in seq[at + 1:]), lg=0)
        a('s_barrier')
        if a.opt.get('lts') and vt < 200 and lo_ts is not None: stamp(a, lo_ts, 16 + ri)
        if ri == 0 and vc is not None: count_in(a, vc); seq.append((None, 1))
        fill(ri)
        if ri == len(rounds) - 1 and last: last()
        a(f'v_add_u32 v{t0+2}, {off[ri]}, v{m.lb}')
        for j in range(m.ntile):
            m.tile_sreg(a, j, 35)
            tt = t0 + (j & 1)
            a(f'v_xor_b32 v{tt}, s35, v{m.sg}')
            a(f'v_lshl_add_u32 v{tt}, v{tt}, 5, v{t0+2}')
            for kl in range(n):
                d = m.dest(j, k0 + kl)
                for hf in range(4 if m.pair else 2):
                    a(f'ds_read_b64_tr_b16 {ur(d + 2*hf, 2)}, v{tt} offset:{(4*kl + hf) * m.blk}')
    a.waitf(lg=0)
    a('s_barrier')

def etile_sreg(a, j, sd):
    if j < 2:
        a(f's_lshl_b32 s{sd}, s{S_WAVE}, 1')
        if j: a(f's_add_u32 s{sd}, s{sd}, 1')
    else:
        a(f's_add_u32 s{sd}, s{S_WAVE}, 8')
def dtile_sreg(a, j, sd):
    a(f's_mul_i32 s{sd}, s{S_WAVE}, 10')
    if j: a(f's_add_u32 s{sd}, s{sd}, {j}')

def interleave(a, main, side, start=0, per=1):
    for gi, g in enumerate(main):
        for x in g:
            x() if callable(x) else a(x)
        for x in side.get(gi, []):
            x() if callable(x) else a(x)

def stamp(a, vreg, lane, cyc=False):
    if not a.opt.get('ts'): return
    keep = list(a.lg)
    a('s_memtime s[98:99]' if cyc else 's_memrealtime s[98:99]'); a.waitf(lg=0)
    a.lg = keep
    if isinstance(lane, str):
        a(f's_mov_b32 m0, {lane}'); a(f'v_writelane_b32 v{vreg}, s98, m0')
    else:
        a(f'v_writelane_b32 v{vreg}, s98, {lane}')
def stamp_init(a, vreg, n):
    if not a.opt.get('ts'): return
    for i in range(n): a(f'v_mov_b32 v{vreg+i}, 0')
def stamp_dump(a, vreg, n, vt):
    if not a.opt.get('ts'): return
    a(f'''
    s_lshl_b32 s30, s{S_ROLE}, 12
    s_lshl_b32 s31, s{S_WAVE}, 10
    s_add_u32 s30, s30, s31
    s_add_u32 s30, s30, {TS_BASE}
    v_lshlrev_b32 v{vt}, 2, v{V_LANE}
    ''')
    for i in range(n): a(f'buffer_store_dword v{vreg+i}, v{vt}, s[{WS}:{WS+3}], s30 offen offset:{256*i}')
    a.waitf(vm=0)

def dpair_sreg(a, j, sd):
    a(f's_mul_i32 s{sd}, s{S_WAVE}, 10')
    if j: a(f's_add_u32 s{sd}, s{sd}, {2*j}')

def interleave2(a, main, side):
    seq = []
    for gi, g in enumerate(main): seq += list(g) + list(side.get(gi, []))
    ismf = lambda x: not callable(x) and x.startswith(('v_mfma', 'v_smfmac'))
    isv = lambda x: not callable(x) and x.startswith('v_')
    i = 0
    while i < len(seq):
        a(seq[i]); j = i + 1
        while j < len(seq) and not ismf(seq[j]): j += 1
        gap = seq[i + 1:j]
        for x in gap:
            if not isv(x): x() if callable(x) else a(x)
        vs = [x for x in gap if isv(x)]
        if vs:
            for x in vs: a._waits(Ins(x))
            if j < len(seq): a._waits(Ins(seq[j]))
        for x in vs: a(x)
        i = j

def after_chain_start(a, vt):
    if not int(a.opt.get('defer', 1)): return
    wait_all_arrived(a, vt)
    l = a.lab('acs')
    a(f's_and_b32 s30, s{S_ROLE}, 31'); a('s_lshl_b32 s30, s30, 7'); a(f's_add_u32 s30, s30, {FL_BASE}')
    a(f'v_mov_b32 v{vt+1}, s30'); a('s_mov_b32 s31, 0')
    a.label(l)
    a(f'''
    buffer_load_dword v{vt}, v{vt+1}, s[{WS}:{WS+3}], 0 offen sc1
    s_add_u32 s31, s31, 1
    s_cmp_gt_u32 s31, {SPIN_MAX}
    s_cbranch_scc1 L_abort
    s_sleep 8
    v_readfirstlane_b32 s30, v{vt}
    s_cmp_eq_u32 s30, 0
    s_cbranch_scc1 {l}
    ''')
```

```python
from common import *

XSLOT = 40960
def x_stage_setup(a, vsrc, vrd, perm=False):
    a(f'''
    v_lshrrev_b32 v{vsrc}, 3, v{V_LANE}
    v_and_b32 v{vrd}, 7, v{V_LANE}
    v_xor_b32 v{vrd}, v{vrd}, v{vsrc}
    ''')
    if perm:
        a(f'''
        v_and_b32 v{vrd+1}, 4, v{vsrc}
        v_add_u32 v{vsrc}, v{vsrc}, v{vrd+1}
        s_and_b32 s30, s{S_WAVE}, 1
        s_lshl_b32 s30, s30, 4
        s_lshr_b32 s31, s{S_WAVE}, 1
        s_lshl_b32 s31, s31, 2
        s_add_u32 s30, s30, s31
        ''')
    else:
        a(f's_lshl_b32 s30, s{S_WAVE}, 3')
    a(f'''
    v_add_u32 v{vsrc}, s30, v{vsrc}
    v_mul_u32_u24 v{vsrc}, 1280, v{vsrc}
    v_lshl_add_u32 v{vsrc}, v{vrd}, 4, v{vsrc}
    s_mul_i32 s40, s{S_WAVE}, 10240
    v_and_b32 v{vrd}, 7, v{V_LANE}
    v_lshrrev_b32 v{vrd+1}, 4, v{V_LANE}
    v_xor_b32 v{vrd+1}, v{vrd+1}, v{vrd}
    v_lshlrev_b32 v{vrd+1}, 4, v{vrd+1}
    v_lshl_add_u32 v{vrd}, v{vrd}, 7, v{vrd+1}
    v_bfe_u32 v{vrd+1}, v{V_LANE}, 3, 1
    v_mul_u32_u24 v{vrd+1}, 10240, v{vrd+1}
    v_add_u32 v{vrd}, v{vrd}, v{vrd+1}
    v_xor_b32 v{vrd+1}, 64, v{vrd}
    ''')
def x_off(tt, ks): return tt * 20480 + (ks >> 1) * 1024

def x_dma(a, vsrc, j, s_slot, s_seg):
    return [f's_add_u32 m0, s{s_slot}, {j*1024}', f's_add_u32 s34, s{s_seg}, {j*128}',
            f'buffer_load_dwordx4 v{vsrc}, s[{SA}:{SA+3}], s34 offen lds']

def role_proj(a):
    a.c('===== projection worker: one 192-column head slice of Wq / Wk / Wv stationary in registers =====')
    a(f's_sub_u32 s30, s{S_ROLE}, {R_PJ}')
    a(f's_and_b32 s{S_H}, s30, 31')
    a(f's_lshr_b32 s{S_P2}, s30, 5')
    a(f's_load_dwordx2 s[44:45], s[0:1], {KA["Wq"]}')
    a(f's_load_dwordx2 s[46:47], s[0:1], {KA["Wk"]}')
    a(f's_load_dwordx2 s[48:49], s[0:1], {KA["Wv"]}')
    srd(a, SA, 'x', 2048 * 1280)
    a.waitf(lg=0)
    a(f'''
    s_cmp_eq_u32 s{S_P2}, 1
    s_cselect_b32 s{SB}, s46, s44
    s_cselect_b32 s{SB+1}, s47, s45
    s_cmp_eq_u32 s{S_P2}, 2
    s_cselect_b32 s{SB}, s48, s{SB}
    s_cselect_b32 s{SB+1}, s49, s{SB+1}
    s_mov_b32 s{SB+2}, {640*12288}
    s_mov_b32 s{SB+3}, 0x20000
    s_mul_i32 s41, s{S_H}, 384
    ''')
    stamp_init(a, 250, 2); stamp(a, 251, 0)
    if a.opt.get('ts'): a('v_writelane_b32 v251, s96, 10')
    stamp(a, 251, 1)
    W = lambda j, ks: 256 + (j * 20 + ks) * 4
    VS, VRD, VX, VXN, VST4, VST3, VFL, VFD = 2, 4, 6, 8, 10, 11, 12, 13
    XF, NXF, ACC, PK, PK3 = 16, 8, 48, 72, 76
    x_stage_setup(a, VS, VRD)
    a('s_mov_b32 s53, 0'); a('s_mov_b32 s54, s40')
    for j in range(10): [a(x) for x in x_dma(a, VS, j, 54, 53)]
    a(f's_mov_b32 s53, {XSLOT}'); a(f's_add_u32 s54, s40, {XSLOT}')
    for j in range(10): [a(x) for x in x_dma(a, VS, j, 54, 53)]
    a(f's_cmp_eq_u32 s{S_P2}, 2'); a('s_cbranch_scc1 L_pj_wv')
    load_weights(a, [WMat(SB, 12288, 24, 20, 1, True, etile_sreg, W, 3)], 16, sbase=[41], vc=14, lo=2*XSLOT, hi=2*XSLOT + 12288*int(a.opt.get('qkr', 6)), pre=20, lo_ts=251)
    a('s_branch L_pj_wd')
    a.label('L_pj_wv', fresh=True)
    load_weights(a, [WMat(SB, 12288, 24, 20, 1, True, etile_sreg, W, 3)], 16, sbase=[41], vc=14, lo=2*XSLOT, pre=20, lo_ts=251)
    a.label('L_pj_wd')
    stamp(a, 251, 2); stamp(a, 251, 8, cyc=True)
    a(f'''
    v_mov_b32 v{VX}, v{VRD}
    v_mov_b32 v{VX+1}, v{VRD+1}
    v_add_u32 v{VXN}, {XSLOT}, v{VRD}
    v_add_u32 v{VXN+1}, {XSLOT}, v{VRD+1}
    s_lshl_b32 s30, s{S_WAVE}, 10
    v_lshl_add_u32 v{VST4}, v{V_LANE}, 4, s30
    v_add_u32 v{VST3}, 8192, v{VST4}
    s_lshl_b32 s30, s{S_ROLE}, 7
    s_lshl_b32 s31, s{S_WAVE}, 2
    s_add_u32 s30, s30, s31
    s_add_u32 s30, s30, {FL_BASE}
    v_mov_b32 v{VFL}, s30
    s_mul_i32 s50, s{S_P2}, {QKV_SZ}
    s_mul_i32 s30, s{S_H}, 12288
    s_add_u32 s50, s50, s30
    s_add_u32 s50, s50, {QKV_BASE}
    s_mov_b32 s51, {OOB}
    s_mov_b32 s52, 0                    ; s
    ''')
    a(f's_mov_b32 s53, {2*XSLOT}'); a(f's_add_u32 s54, s40, {2*XSLOT}')
    a(f's_mov_b32 s55, {2*XSLOT}')
    PF = 6
    def rd(g):
        tt, ks = divmod(g % 40, 20)
        v = (VX if g < 40 else VXN) + (ks & 1)
        return f'ds_read_b128 {vr(XF + 4*(g % NXF), 4)}, v{v} offset:{x_off(tt, ks)}'
    for g in range(PF): a(rd(g))
    a.wait(lg=PF - 1)
    def epi(tt, sreg):
        c = ACC + 12*tt
        l = [f'v_cvt_pk_bf16_f32 v{PK+i}, v{c+2*i}, v{c+2*i+1}' for i in range(4)]
        l += [f'v_cvt_pk_bf16_f32 v{PK3+2*tt+i}, v{c+8+2*i}, v{c+8+2*i+1}' for i in range(2)]
        st = [f's_add_u32 s35, s{sreg}, {4096*tt}', f'buffer_store_dwordx4 {vr(PK,4)}, v{VST4}, s[{WS}:{WS+3}], s35 offen sc1']
        if tt: st.append(f'buffer_store_dwordx4 {vr(PK3,4)}, v{VST3}, s[{WS}:{WS+3}], s{sreg} offen sc1')
        return l, st
    a.label('L_pj_loop')
    if not a.opt.get('nolst'): stamp(a, 250, 's52')
    main = []; side = {}
    for g in range(40):
        tt, ks = divmod(g, 20)
        mf = []
        for j in range(3):
            c = vr(ACC + 12*tt + 4*j, 4)
            mf.append(f'v_mfma_f32_16x16x32_bf16 {c}, {ur(W(j, ks), 4)}, {vr(XF + 4*(g % NXF), 4)}, {c if ks else 0}')
        main.append([mf[0], rd(g + PF), mf[1], lambda: a.wait(lg=PF - 1), mf[2]])
    def put(g, l): side.setdefault(g, []).extend(l)
    put(0, ['s_barrier'])
    cv, st = epi(1, 51)
    put(2, cv[:2]); put(3, cv[2:4]); put(5, cv[4:]); put(6, st[:2]); put(8, st[2:])
    for j in range(10): put(1 + 3*j, [] if a.opt.get('nodma') else x_dma(a, VS, j, 54, 53))
    cv, st = epi(0, 50)
    put(23, cv[:2]); put(24, cv[2:4]); put(26, cv[4:]); put(27, st)
    put(32, [lambda: a.waitf(vm=8), 's_barrier', f'v_mov_b32 v{VFD}, s52', 's_mov_b64 exec, 1',
             f'buffer_store_dword v{VFD}, v{VFL}, s[{WS}:{WS+3}], 0 offen sc1', 's_mov_b64 exec, -1'])
    def early():
        l = a.lab('pje')
        a('s_cmp_gt_u32 s52, 2'); a.branch(f's_cbranch_scc1 {l}', nofence=True)
        keep = list(a.hist)
        a.waitf(vm=1)
        a(f'v_mov_b32 v{VFD}, s52'); a('s_mov_b64 exec, 1')
        a(f'buffer_store_dword v{VFD}, v{VFL}, s[{WS}:{WS+3}], 0 offen sc1'); a('s_mov_b64 exec, -1')
        a.hist = []; a.label(l); a.hist = keep
    put(11, [early])
    put(35, [f's_mov_b32 s51, s50', f's_add_u32 s50, s50, {32*12288}'])
    put(36, [f's_add_u32 s53, s53, {XSLOT}', 's_add_u32 s52, s52, 1'])
    put(37, [f'v_mov_b32 v{VX}, v{VXN}', f'v_mov_b32 v{VX+1}, v{VXN+1}'])
    put(38, [f's_add_u32 s56, s55, {XSLOT}', f's_cmp_eq_u32 s56, {3*XSLOT}', 's_cselect_b32 s56, 0, s56', 's_add_u32 s54, s56, s40'])
    interleave(a, main, side)
    a(f'''
    v_add_u32 v{VXN}, s55, v{VRD}
    v_add_u32 v{VXN+1}, s55, v{VRD+1}
    s_mov_b32 s55, s56
    s_cmp_lt_u32 s52, 64
    ''')
    a.branch('s_cbranch_scc1 L_pj_loop', nofence=True)
    cv, st = epi(1, 51)
    for x in cv + st: a(x)
    a.waitf(vm=0, lg=0)
    stamp(a, 251, 3); stamp(a, 251, 9, cyc=True); stamp_dump(a, 250, 2, 14)
    a(f'''
    v_mov_b32 v{VFD}, s52
    s_mov_b64 exec, 1
    buffer_store_dword v{VFD}, v{VFL}, s[{WS}:{WS+3}], 0 offen sc1
    s_mov_b64 exec, -1
    s_barrier
    s_branch L_xc
    ''')

def role_vo(a):
    a.c('===== VO worker: Wo[h] stationary, VO = V[h] Wo[h] per segment =====')
    a(f's_sub_u32 s{S_H}, s{S_ROLE}, {R_VO}')
    srd(a, SB, 'Wo', 32 * 245760)
    a.waitf(lg=0)
    a(f's_mul_i32 s41, s{S_H}, 245760')
    stamp_init(a, 250, 3); stamp(a, 251, 0)
    stamp(a, 251, 1)
    W = lambda j, ks: 256 + (j * 6 + ks) * 4
    load_weights(a, [WMat(SB, 1280, 80, 6, 1, False, dtile_sreg, W, 10)], 8, sbase=[41], vc=4, lo_ts=251)
    stamp(a, 251, 2)
    wait_all_arrived(a, 8)
    stamp(a, 251, 4)
    VL, VL2, VL3, VST, VFL, VFD, VZ = 2, 3, 4, 5, 6, 7, 8
    FLG, ACC, PK, VB = 12, 16, 32, 48
    a(f'''
    v_lshlrev_b32 v{VL}, 4, v{V_LANE}
    v_add_u32 v{VL2}, 4096, v{VL}
    v_add_u32 v{VL3}, 8192, v{VL}
    s_mul_i32 s30, s{S_WAVE}, {10*32768}
    s_lshl_b32 s31, s{S_H}, 10
    s_add_u32 s30, s30, s31
    v_add_u32 v{VST}, s30, v{VL}
    s_lshl_b32 s30, s{S_ROLE}, 7
    s_lshl_b32 s31, s{S_WAVE}, 2
    s_add_u32 s30, s30, s31
    s_add_u32 s30, s30, {FL_BASE}
    v_mov_b32 v{VFL}, s30
    v_mov_b32 v{VZ}, 0
    s_lshl_b32 s56, s{S_H}, 7
    s_add_u32 s56, s56, {flag_off(R_PJ + 64)}
    s_mul_i32 s50, s{S_H}, 12288
    s_add_u32 s50, s50, {QKV_BASE + 2*QKV_SZ}
    s_mov_b32 s51, {VO_BASE}
    s_mov_b32 s52, 0                              ; s
    s_mov_b32 s57, 0
    ''')
    fl = f'buffer_load_dwordx4 {vr(FLG,4)}, v{VZ}, s[{WS}:{WS+3}], s56 offen sc1'
    chk = f'''
    v_min_u32 v{FLG}, v{FLG}, v{FLG+1}
    v_min3_u32 v{FLG}, v{FLG}, v{FLG+2}, v{FLG+3}
    v_readfirstlane_b32 s57, v{FLG}
    '''
    def loads(buf, sreg):
        l = []
        for f in range(12):
            l.append(f'buffer_load_dwordx4 {vr(VB + 48*buf + 4*f, 4)}, v{(VL, VL2, VL3)[f // 4]}, s[{WS}:{WS+3}], s{sreg} offen offset:{(f % 4) * 1024} sc1')
        return l
    def fetch_now(buf):
        lp = a.lab('vpl')
        a('s_mov_b32 s31, 0')
        a.vm = []; a.label(lp)
        a(f'''
        {fl}
        s_add_u32 s31, s31, 1
        s_cmp_gt_u32 s31, {SPIN_MAX}
        s_cbranch_scc1 L_abort
        {chk}
        s_cmp_le_u32 s57, s52
        s_cbranch_scc1 {lp}
        s_sub_u32 s59, s50, {32*12288}
        ''')
        for x in loads(buf, 59): a(x)
        a.settle(3)
    a(f's_add_u32 s50, s50, {32*12288}')
    fetch_now(0)
    a.label('L_vo_loop')
    for buf in range(2):
        stamp(a, 250, 's52')
        sel = (chk + f'''
        s_add_u32 s30, s52, 1
        s_cmp_le_u32 s57, s30
        s_cselect_b32 s58, 1, 0
        s_cselect_b32 s59, {OOB}, s50
        s_cmp_ge_u32 s30, 64
        s_cselect_b32 s58, 0, s58
        ''')
        ld = loads(1 - buf, 59)
        for k in range(2):
            for i in range(2): a(f'v_swap_b32 v{VB+48*buf+32+8*k+2+i}, v{VB+48*buf+32+8*k+4+i}')
        main = []; side = {}
        for dt in range(10):
            for ks in range(6):
                grp = []
                for tt in range(2):
                    c = vr(ACC + 8*(dt & 1) + 4*tt, 4)
                    grp.append(f'v_mfma_f32_16x16x32_bf16 {c}, {vr(VB + 48*buf + (16*tt + 4*ks if ks < 4 else 32 + 8*(ks-4) + 4*tt), 4)}, {ur(W(dt, ks), 4)}, {c if ks else 0}')
                main.append(grp)
        def epi(dt):
            c = ACC + 8*(dt & 1); p = PK + 4*(dt & 1)
            return ([f'v_cvt_pk_bf16_f32 v{p+i}, v{c+2*i}, v{c+2*i+1}' for i in range(4)],
                    [f's_add_u32 s34, s51, {dt*32768}', f'buffer_store_dwordx4 {vr(p,4)}, v{VST}, s[{WS}:{WS+3}], s34 offen sc1'])
        for dt in range(9):
            cv, st = epi(dt)
            side.setdefault(6*dt + 9, []).extend(cv[:2]); side.setdefault(6*dt + 10, []).extend(cv[2:]); side.setdefault(6*dt + 11, []).extend(st)
        side.setdefault(12, []).append(fl); side.setdefault(25, []).append(sel)
        for f in range(12): side.setdefault(26 + 2*f, []).append(ld[f])
        def flag():
            n = 3
            a.waitf(vm=n)
            a(f'v_mov_b32 v{VFD}, s52'); a('s_mov_b64 exec, 1')
            a(f'buffer_store_dword v{VFD}, v{VFL}, s[{WS}:{WS+3}], 0 offen sc1'); a('s_mov_b64 exec, -1')
        side.setdefault(20, []).append(flag)
        interleave(a, main, side)
        cv, st = epi(9)
        for x in cv + st: a(x)
        a(f'''
        s_add_u32 s50, s50, {32*12288}
        s_add_u32 s51, s51, {40*32768}
        s_add_u32 s52, s52, 1
        s_cmp_eq_u32 s58, 0
        ''')
        nf = a.lab('vnf'); pf = a.lab('vpf')
        a(f's_cbranch_scc0 {pf}')
        a(f's_cmp_gt_u32 s52, {int(a.opt.get("vpf", 0))}')
        a(f's_cbranch_scc1 {nf}')
        a.label(pf)
        keep = list(a.vm)
        a.waitf(vm=0)
        a(f'v_mov_b32 v{VFD}, s52'); a('s_mov_b64 exec, 1')
        a(f'buffer_store_dword v{VFD}, v{VFL}, s[{WS}:{WS+3}], 0 offen sc1'); a('s_mov_b64 exec, -1')
        a('s_cmp_eq_u32 s58, 0')
        a(f's_cbranch_scc1 {nf}')
        fetch_now(1 - buf)
        a.label(nf)
    a('s_cmp_lt_u32 s52, 64')
    a('s_cbranch_scc1 L_vo_loop')
    a.waitf(vm=0)
    stamp(a, 251, 3); stamp_dump(a, 250, 3, 10)
    a(f'''
    v_mov_b32 v{VFD}, s52
    s_mov_b64 exec, 1
    buffer_store_dword v{VFD}, v{VFL}, s[{WS}:{WS+3}], 0 offen sc1
    s_mov_b64 exec, -1
    s_barrier
    s_branch L_xc
    ''')
```

```python
from common import *
from chain import step_base, S_BASE

def role_xc(a):
    a.c('===== XC: segment rows out = gate-mix(P [Z; VO], S5) for 128 columns; tasks taken from a counter =====')
    OUT, XS, DS = SA, SB, SC
    def xt(i):
        if a.opt.get('ts'): a.raw(f'    s_memrealtime s[{80+2*i}:{81+2*i}]')
    if int(a.opt.get('farxc', 1)):
        a(f's_sub_u32 s30, s{S_SLOT}, 138'); a(f's_cmp_ge_u32 s30, {int(a.opt.get("nxc", 44))}'); a('s_cbranch_scc1 L_end')
    srd(a, OUT, 'out', 2048 * 640 * 4); srd(a, XS, 'x', 2048 * 1280); srd(a, DS, 'dsk', 1280)
    a.waitf(vm=0, lg=0)
    VL, VPM, VF1, VF2, VW, VR_, VE, T = 2, 3, 4, 5, 6, 7, 8, 12
    ACC, PX, PM, ZF, EP = 24, 88, 152, 168, 232
    wait_all_arrived(a, T)
    a(f"""
    v_lshlrev_b32 v{VL}, 4, v{V_LANE}
    v_and_b32 v{T}, 15, v{V_LANE}
    v_lshrrev_b32 v{T+1}, 4, v{V_LANE}
    v_mul_u32_u24 v{VPM}, 2560, v{T+1}
    v_lshl_add_u32 v{VPM}, v{T}, 4, v{VPM}
    s_lshl_b32 s30, s{S_WAVE}, 14
    v_add_u32 v{VW}, s30, v{VL}
    s_lshl_b32 s30, s{S_WAVE}, 12
    v_add_u32 v{VR_}, s30, v{VL}
    s_lshl_b32 s30, s{S_WAVE}, 10
    s_add_u32 s30, s30, {flag_off(R_VO)}
    v_and_b32 v{T+2}, 7, v{V_LANE}
    v_lshl_add_u32 v{VF1}, v{T+2}, 7, s30
    s_mov_b32 s44, 0xffff0000
    """)
    a.label('L_xc_loop')
    sk = a.lab('xk')
    a(f'v_mov_b32 v{T}, {65536}')
    a(f's_cmp_lg_u32 s{S_WAVE}, 0'); a(f's_cbranch_scc1 {sk}')
    a(f"""
    v_mov_b32 v{T+1}, 16
    v_mov_b32 v{T+2}, 1
    s_mov_b64 exec, 1
    buffer_atomic_add v{T+2}, v{T+1}, s[{DBG}:{DBG+3}], 0 offen sc0 sc1
    ds_write_b32 v{T}, v{T+2}
    s_mov_b64 exec, -1
    """)
    a.waitf(lg=0)
    a.label(sk)
    a('s_barrier')
    a(f'ds_read_b32 v{T+1}, v{T}')
    a(f'v_readfirstlane_b32 s50, v{T+1}')
    a('s_cmp_ge_u32 s50, 320'); a('s_cbranch_scc1 L_end')
    a(f"""
    s_mul_i32 s52, s50, 13108
    s_lshr_b32 s52, s52, 16                 ; segment
    s_mul_i32 s30, s52, 5
    s_sub_u32 s53, s50, s30
    """)
    assert all((t * 13108) >> 16 == t // 5 for t in range(320))
    def wait_flags(vaddr):
        lp = a.lab('xp'); ok = a.lab('xo')
        a('s_mov_b32 s31, 0')
        keep = list(a.vm)
        a.label(lp)
        a(f"""
        buffer_load_dwordx4 {vr(T,4)}, v{vaddr}, s[{WS}:{WS+3}], 0 offen sc1
        s_add_u32 s31, s31, 1
        s_cmp_gt_u32 s31, {SPIN_MAX}
        s_cbranch_scc1 L_abort
        v_min_u32 v{T}, v{T}, v{T+1}
        v_min3_u32 v{T}, v{T}, v{T+2}, v{T+3}
        v_cmp_ge_u32 vcc, s52, v{T}
        s_cbranch_vccz {ok}
        s_sleep 4
        s_branch {lp}
        """)
        a.label(ok, fresh=True)
    xt(0)
    wait_flags(VF1)
    a(f"""
    s_mul_i32 s54, s52, {40*32768}
    s_lshl_b32 s30, s53, 18
    s_add_u32 s54, s54, s30
    s_lshl_b32 s30, s{S_WAVE}, 13
    s_add_u32 s54, s54, s30
    s_add_u32 s54, s54, {VO_BASE}
    """)
    VOR = lambda hh, dt: 256 + (dt * 8 + hh) * 4
    for dt in range(8):
        for q in range(2):
            a(f's_add_u32 s34, s54, {dt*32768 + q*4096}')
            for k in range(4): a(f'buffer_load_dwordx4 {ur(VOR(4*q+k, dt), 4)}, v{VL}, s[{WS}:{WS+3}], s34 offen offset:{k*1024} sc1')
    a(f"""
    s_lshl_b32 s30, s{S_WAVE}, 3
    v_and_b32 v{T}, 7, v{V_LANE}
    v_add_u32 v{T}, s30, v{T}
    v_and_b32 v{T+1}, 8, v{V_LANE}
    v_lshl_add_u32 v{T}, v{T+1}, 2, v{T}
    s_lshl_b32 s30, s53, 1
    s_add_u32 s30, s30, {R_S5B - 16}
    v_add_u32 v{T+1}, s30, v{V_LANE}
    v_cmp_gt_u32 vcc, 16, v{V_LANE}
    v_cndmask_b32 v{T}, v{T+1}, v{T}, vcc
    s_lshr_b32 s30, s52, 4
    s_add_u32 s30, s30, {R_SP}
    v_mov_b32 v{T+1}, s30
    v_cmp_gt_u32 vcc, 18, v{V_LANE}
    v_cndmask_b32 v{T}, v{T+1}, v{T}, vcc
    v_lshlrev_b32 v{VF2}, 7, v{T}
    v_add_u32 v{VF2}, {FL_BASE}, v{VF2}
    """)
    a(f"""
    s_lshr_b32 s30, s{S_WAVE}, 1
    s_lshl_b32 s31, s52, 1
    s_add_u32 s31, s31, s30
    s_lshl_b32 s32, s53, 3
    s_and_b32 s33, s{S_WAVE}, 1
    s_lshl_b32 s33, s33, 2
    s_add_u32 s32, s32, s33
    s_mul_i32 s55, s31, 40
    s_add_u32 s55, s55, s32
    s_lshl_b32 s55, s55, 10
    s_add_u32 s55, s55, {BB_BASE}
    s_lshl_b32 s31, s31, 4
    v_and_b32 v{T}, 15, v{V_LANE}
    v_add_u32 v{T}, s31, v{T}               ; token
    v_lshrrev_b32 v{T+1}, 4, v{V_LANE}
    s_lshl_b32 s32, s32, 5
    v_lshl_add_u32 v{VE}, v{T+1}, 3, s32
    v_mul_u32_u24 v{VE+1}, 1280, v{T}
    v_add_u32 v{VE+1}, v{VE+1}, v{VE}       ; x offset
    v_lshlrev_b32 v{VE+2}, 1, v{VE+1}
    v_lshlrev_b32 v{VE+3}, 3, v{T}
    v_add_u32 v{VE+3}, {G_BASE}, v{VE+3}
    """)
    XR, DR, GR = EP, EP + 8, EP + 16
    for k in range(4):
        a(f'buffer_load_dwordx2 {vr(XR + 2*k, 2)}, v{VE+1}, s[{XS}:{XS+3}], 0 offen offset:{k*32}')
        a(f'buffer_load_dwordx2 {vr(DR + 2*k, 2)}, v{VE}, s[{DS}:{DS+3}], 0 offen offset:{k*32}')
    if int(a.opt.get('coarse', 1)):
        lp = a.lab('xcw'); ok = a.lab('xcok')
        a('s_mov_b32 s31, 0'); a(f'v_mov_b32 v{T+1}, {flag_off(R_B)}')
        a.label(lp)
        a(f"""
        buffer_load_dword v{T}, v{T+1}, s[{WS}:{WS+3}], 0 offen sc1
        s_add_u32 s31, s31, 1
        s_cmp_gt_u32 s31, {SPIN_MAX}
        s_cbranch_scc1 L_abort
        v_readfirstlane_b32 s30, v{T}
        s_add_u32 s30, s30, 1
        s_cmp_ge_u32 s30, s52
        s_cbranch_scc1 {ok}
        s_sleep 32
        s_branch {lp}
        """)
        a.label(ok, fresh=True)
    wait_flags(VF2)
    xt(1)
    step_base(a, S_BASE, 52)
    a(f"""
    s_mul_i32 s56, s52, {32*2560}
    s_mul_i32 s30, s{S_WAVE}, {8*2560}
    s_add_u32 s56, s56, s30
    s_add_u32 s56, s56, {PX_BASE}
    s_lshl_b32 s30, s53, 17
    s_add_u32 s57, s{S_BASE}, s30
    s_lshl_b32 s30, s{S_WAVE}, 11
    s_add_u32 s57, s57, s30
    s_add_u32 s57, s57, {8*16384}
    """)
    for hh in range(8):
        a(f's_add_u32 s34, s56, {hh*2560}')
        for it in range(2): a(f'buffer_load_dwordx4 {vr(PX + 8*hh + 4*it, 4)}, v{VL}, s[{WS}:{WS+3}], s34 offen offset:{it*1024} sc1')
    for u in range(2):
        a(f's_add_u32 s34, s56, {u*4*2560}')
        for it in range(2): a(f'buffer_load_dwordx4 {vr(PM + 8*u + 4*it, 4)}, v{VPM}, s[{WS}:{WS+3}], s34 offen offset:{2048 + it*256} sc1')
    for dt in range(8):
        a(f's_add_u32 s34, s57, {dt*16384}')
        for u in range(2): a(f'buffer_load_dwordx4 {vr(ZF + 8*dt + 4*u, 4)}, v{VL}, s[{WS}:{WS+3}], s34 offen offset:{u*1024} sc1')
    a(f'buffer_load_dwordx2 {vr(GR,2)}, v{VE+3}, s[{WS}:{WS+3}], 0 offen sc1')
    for hh in range(8):
        for it in range(2):
            for dt in range(8):
                c = vr(ACC + 32*it + 4*dt, 4)
                a(f'v_mfma_f32_16x16x32_bf16 {c}, {ur(VOR(hh, dt), 4)}, {vr(PX + 8*hh + 4*it, 4)}, {c if hh else 0}')
    xt(2)
    YR = PX
    for k in range(4): a(f'buffer_load_dwordx4 {vr(YR + 4*k, 4)}, v{VL}, s[{WS}:{WS+3}], s55 offen offset:{k*1024} sc1')
    for dt in range(8):
        for u in range(2):
            for it in range(2):
                c = vr(ACC + 32*it + 4*dt, 4)
                a(f'v_mfma_f32_16x16x32_bf16 {c}, {vr(ZF + 8*dt + 4*u, 4)}, {vr(PM + 8*u + 4*it, 4)}, {c}')
    xt(3)
    for t in range(16): a(f'ds_write_b128 v{VW}, {vr(ACC + 4*t, 4)} offset:{t*1024}')
    a.waitf(lg=0); a('s_barrier')
    for k in range(4):
        for w in range(4): a(f'ds_read_b128 {vr(ACC + 16*k + 4*w, 4)}, v{VR_} offset:{w*16384 + k*1024}')
    for k in range(4):
        b = ACC + 16*k; y = YR + 4*k
        for i in range(4): a(f'v_add_f32 v{b+i}, v{b+i}, v{b+4+i}')
        for i in range(4): a(f'v_add_f32 v{b+8+i}, v{b+8+i}, v{b+12+i}')
        for i in range(4): a(f'v_add_f32 v{b+i}, v{b+i}, v{b+8+i}')
        def rnd(x0, x1, t):
            a(f'v_cvt_pk_bf16_f32 v{t}, v{x0}, v{x1}'); a(f'v_lshlrev_b32 v{x0}, 16, v{t}'); a(f'v_and_b32 v{x1}, s44, v{t}')
        for p in range(2):
            x0, x1, s0, s1, t = b + 2*p, b + 2*p + 1, b + 4, b + 5, b + 8
            rnd(x0, x1, t)
            a(f'v_mul_f32 v{x0}, v{x0}, v{GR}'); a(f'v_mul_f32 v{x1}, v{x1}, v{GR}')
            rnd(x0, x1, t)
            a(f"""
            v_lshlrev_b32 v{s0}, 16, v{XR+2*k+p}
            v_and_b32 v{s1}, s44, v{XR+2*k+p}
            v_lshlrev_b32 v{s0+2}, 16, v{DR+2*k+p}
            v_and_b32 v{s1+2}, s44, v{DR+2*k+p}
            v_mul_f32 v{s0}, v{s0}, v{s0+2}
            v_mul_f32 v{s1}, v{s1}, v{s1+2}
            """)
            rnd(s0, s1, t)
            a(f"""
            v_add_f32 v{s0}, v{s0}, v{y+2*p}
            v_add_f32 v{s1}, v{s1}, v{y+2*p+1}
            v_mul_f32 v{s0}, v{s0}, v{GR+1}
            v_mul_f32 v{s1}, v{s1}, v{GR+1}
            v_add_f32 v{x0}, v{x0}, v{s0}
            v_add_f32 v{x1}, v{x1}, v{s1}
            """)
        a(f'buffer_store_dwordx4 {vr(b,4)}, v{VE+2}, s[{OUT}:{OUT+3}], 0 offen offset:{k*64}')
    if a.opt.get('ts'):
        a.waitf(vm=0); xt(4); a.waitf(lg=0)
        for i in range(5): a(f'v_writelane_b32 v{T}, s{80+2*i}, {i}')
        a(f'v_writelane_b32 v{T}, s{S_SLOT}, 5')
        a(f's_lshl_b32 s30, s50, 5'); a(f's_add_u32 s30, s30, {TS_BASE + 6*MB}')
        a(f's_cmp_eq_u32 s{S_WAVE}, 0'); a(f's_cselect_b32 s30, s30, {OOB}')
        a(f'v_lshlrev_b32 v{T+1}, 2, v{V_LANE}'); a('s_mov_b64 exec, 0xff')
        a(f'buffer_store_dword v{T}, v{T+1}, s[{WS}:{WS+3}], s30 offen'); a('s_mov_b64 exec, -1')
    a('s_branch L_xc_loop')
```

```python
import sys, importlib
from common import *
import workers
def build(enabled=('pj', 'vo', 'c', 'b', 'r', 's5a', 's5b', 'xc'), **opt):
    a = Asm(); a.opt = opt
    a(f'''
    s_cmp_ge_u32 s2, 256
    s_cbranch_scc1 L_end
    s_load_dwordx2 s[{WS}:{WS+1}], s[0:1], {KA["ws"]}
    s_load_dwordx2 s[{DBG}:{DBG+1}], s[0:1], {KA["dbg"]}
    s_mov_b32 s{WS+2}, {WS_BYTES}
    s_mov_b32 s{WS+3}, 0x20000
    s_mov_b32 s{DBG+2}, 256
    s_mov_b32 s{DBG+3}, 0x20000
    v_and_b32 v{V_LANE}, 63, v0
    v_lshrrev_b32 v2, 6, v0
    v_readfirstlane_b32 s{S_WAVE}, v2
    ''')
    if opt.get('ts'): a('s_memrealtime s[96:97]')
    a(f'''
    s_getreg_b32 s40, hwreg(HW_REG_XCC_ID)
    s_and_b32 s40, s40, 7
    v_mov_b32 v4, 0
    s_cmp_lg_u32 s{S_WAVE}, 0
    ''')
    a.waitf(lg=0)
    a('s_cbranch_scc1 L_tk')
    a(f'''
    s_lshl_b32 s30, s40, 4
    s_add_u32 s30, s30, 64
    v_mov_b32 v2, s30
    v_mov_b32 v3, 1
    s_mov_b64 exec, 1
    buffer_atomic_add v3, v2, s[{DBG}:{DBG+3}], 0 offen sc0 sc1
    s_mov_b64 exec, -1
    v_readfirstlane_b32 s41, v3
    s_cmp_lt_u32 s41, 32
    s_cbranch_scc1 L_tk_ok
    v_mov_b32 v2, 20
    v_mov_b32 v3, 1
    s_mov_b64 exec, 1
    buffer_atomic_add v3, v2, s[{DBG}:{DBG+3}], 0 offen sc0 sc1
    s_mov_b64 exec, -1
    v_readfirstlane_b32 s42, v3
    v_and_b32 v2, 7, v{V_LANE}
    v_lshlrev_b32 v2, 4, v2
    s_mov_b32 s31, 0
    ''')
    a.label('L_tk_all')
    a(f'''
    buffer_load_dword v3, v2, s[{DBG}:{DBG+3}], 0 offen offset:64 sc1
    s_add_u32 s31, s31, 1
    s_cmp_gt_u32 s31, {SPIN_MAX}
    s_cbranch_scc1 L_end
    v_mov_b32 v5, v3
    v_add_u32_dpp v5, v5, v5 row_ror:4 row_mask:0xf bank_mask:0xf
    v_add_u32_dpp v5, v5, v5 row_ror:2 row_mask:0xf bank_mask:0xf
    v_add_u32_dpp v5, v5, v5 row_ror:1 row_mask:0xf bank_mask:0xf
    v_readfirstlane_b32 s30, v5
    s_cmp_lt_u32 s30, 256
    s_cbranch_scc1 L_tk_all
    s_mov_b32 s40, 0
    ''')
    a.label('L_tk_hole')
    a('''
    v_readlane_b32 s41, v3, s40
    s_min_u32 s41, s41, 32
    s_add_u32 s41, s41, s42
    s_cmp_lt_u32 s41, 32
    s_cbranch_scc1 L_tk_ok
    s_sub_u32 s42, s41, 32
    s_add_u32 s40, s40, 1
    s_cmp_lt_u32 s40, 8
    s_cbranch_scc1 L_tk_hole
    s_branch L_end
    ''')
    a.label('L_tk_ok', fresh=True)
    a(f'''
    s_lshl_b32 s41, s41, 2
    s_and_b32 s30, s40, 3
    s_add_u32 s41, s41, s30
    s_and_b32 s30, s40, 4
    s_lshl_b32 s30, s30, 5
    s_add_u32 s41, s41, s30
    v_mov_b32 v3, s41
    ds_write_b32 v4, v3
    ''')
    a.waitf(lg=0)
    a.label('L_tk')
    a(f'''
    s_barrier
    ds_read_b32 v3, v4
    v_readfirstlane_b32 s30, v3
    s_barrier
    s_and_b32 s{S_ROLE}, s30, 255
    s_mov_b32 s{S_SLOT}, s{S_ROLE}
    s_sub_u32 s30, s{S_ROLE}, {R_S5B}
    s_cmp_lt_u32 s30, 10
    s_cselect_b32 s31, {R_PJ - R_S5B}, 0
    s_sub_u32 s30, s{S_ROLE}, {R_PJ}
    s_cmp_lt_u32 s30, 10
    s_cselect_b32 s31, {R_S5B - R_PJ}, s31
    s_add_u32 s{S_ROLE}, s{S_ROLE}, s31
    ''')
    a.waitf(lg=0)
    table = [('c', R_B), ('b', R_R), ('r', R_S5A), ('s5a', R_S5B), ('s5b', R_SP), ('sp', R_PJ), ('pj', R_VO), ('vo', 256)]
    for nm, hi in table[:-1]:
        a(f's_cmp_lt_u32 s{S_ROLE}, {hi}')
        a(f's_cbranch_scc1 L_role_{nm if nm in enabled else "sp"}')
    a(f's_branch L_role_{"vo" if "vo" in enabled else "sp"}')
    mods = {'pj': workers.role_proj, 'vo': workers.role_vo}
    try:
        import chain; mods.update({'c': chain.role_c, 'b': chain.role_b, 'r': chain.role_r})
    except ImportError: pass
    try:
        import s5; mods.update({'s5a': s5.role_s5a, 's5b': s5.role_s5b})
    except ImportError: pass
    for nm in ('c', 'b', 'r', 's5a', 's5b', 'pj', 'vo'):
        if nm in enabled:
            a.raw('.p2align 6')
            a.label(f'L_role_{nm}', fresh=True); mods[nm](a)
    a.label('L_role_sp', fresh=True)
    arrive(a, 8)
    a(f's_lshl_b32 s30, s{S_ROLE}, 2'); a(f's_add_u32 s30, s30, s{S_WAVE}'); a(f's_cmp_lg_u32 s30, {4*R_SP}'); a('s_cbranch_scc1 L_nogo')
    raise_go(a, 8)
    a.label('L_nogo')
    a(f's_cmp_lt_u32 s{S_ROLE}, {R_S5A}')
    a('s_cbranch_scc1 L_end')
    if 'xc' in enabled or 'g' in enabled:
        a(f's_cmp_lt_u32 s{S_ROLE}, {R_SP}'); a('s_cbranch_scc1 L_xc')
        a(f's_cmp_ge_u32 s{S_ROLE}, {R_PJ}'); a('s_cbranch_scc1 L_xc')
        s5.role_gate(a)
    a.label('L_xc')
    if 'xc' in enabled:
        import xc; xc.role_xc(a)
    a('s_branch L_end')
    a.saved.setdefault('L_abort', a.state())
    a.label('L_abort', fresh=True)
    a.waitf(vm=0, lg=0)
    a(f'''
    v_mov_b32 v2, 4
    v_mov_b32 v3, 1
    s_mov_b64 exec, 1
    buffer_atomic_add v3, v2, s[{DBG}:{DBG+3}], 0 offen sc1
    v_mov_b32 v2, 8
    v_mov_b32 v3, s{S_ROLE}
    buffer_store_dword v3, v2, s[{DBG}:{DBG+3}], 0 offen sc1
    ''')
    a.saved['L_end'] = ([], [], False); a.vm = []; a.lg = []; a.smem = False
    a.label('L_end')
    a('s_endpgm')
    ref = open(f'cdna_kernels/{NAME}.s.ref').read().split('\n')
    head = [l for l in ref if l.startswith(';') and '@launch' not in l and 'Override' not in l and 'grid=ceil' not in l]
    txt = '\n'.join(head) + f'''
; @launch grid=(256,1,1) block=(256,1,1) lds=163840
.amdgcn_target "amdgcn-amd-amdhsa--gfx950"
.text
.globl {NAME}_kernel
.p2align 8
.type {NAME}_kernel,@function
{NAME}_kernel:
''' + a.text() + f'''.section .rodata,"a"
.p2align 6
.amdhsa_kernel {NAME}_kernel
  .amdhsa_next_free_vgpr 512
  .amdhsa_next_free_sgpr 102
  .amdhsa_accum_offset 256
  .amdhsa_group_segment_fixed_size 0
  .amdhsa_kernarg_size 160
  .amdhsa_user_sgpr_count 2
  .amdhsa_user_sgpr_kernarg_segment_ptr 1
  .amdhsa_system_sgpr_workgroup_id_x 1
  .amdhsa_float_denorm_mode_32 3
.end_amdhsa_kernel
'''
    return txt
if __name__ == '__main__':
    en = sys.argv[2].split(',') if len(sys.argv) > 2 else ('pj', 'vo', 'c', 'b', 'r', 's5a', 's5b', 'xc')
    opt = dict(kv.split('=') for kv in sys.argv[3:])
    open(sys.argv[1], 'w').write(build(en, **opt))
```

```python
from common import *
import math
S_STEP, S_BASE, S_B2 = 61, 62, 63
CSC = (192 ** -0.5) * math.log2(math.e)
import struct
def f32(x): return '0x%08x' % struct.unpack('<I', struct.pack('<f', x))[0]
NL = 14
WL_SZ = NL * 2048
L_MEM = 4 * WL_SZ; L_KX = L_MEM + 10240; L_QI = L_KX + 24576; L_KI = L_QI + 6144
assert L_KI + 6144 + 16 <= 163840
WORK = 256 - (60 - 32 - NL) * 8

def step_base(a, dst, sstep, add=0):
    if add: a(f's_add_u32 s36, s{sstep}, {add}'); sstep = 36
    a(f'''
    s_lshr_b32 s37, s{sstep}, 1
    s_lshl_b32 s{dst}, s37, 21
    s_lshr_b32 s37, s{S_PAR}, s37
    s_and_b32 s37, s37, 1
    s_lshl_b32 s37, s37, 13
    s_add_u32 s{dst}, s{dst}, s37
    s_and_b32 s37, s{sstep}, 1
    s_lshl_b32 s37, s37, 15
    s_add_u32 s{dst}, s{dst}, s37
    ''')
def page(c, n): return n * 65536 + (((c ^ (n >> 3)) & 1) << 14) + ((((c >> 1) ^ (n >> 4)) & 1) << 12)
def s_page(a, d, c, n, t):
    a(f'''
    s_lshr_b32 s{t}, s{n}, 3
    s_xor_b32 s{t}, s{t}, s{c}
    s_lshl_b32 s{d}, s{n}, 16
    s_bitcmp1_b32 s{t}, 0
    s_cselect_b32 s{n}, 16384, 0
    s_add_u32 s{d}, s{d}, s{n}
    s_bitcmp1_b32 s{t}, 1
    s_cselect_b32 s{n}, 4096, 0
    s_add_u32 s{d}, s{d}, s{n}
    ''')
def v_zpage(a, d, r, t, sh):
    a(f'''
    v_lshrrev_b32 v{t}, 2, v{r}
    v_lshl_add_u32 v{t}, v{t}, 1, s{sh}
    v_add_u32 v{t}, 3, v{t}
    v_lshl_add_u32 v{d}, v{t}, 16, v{d}
    v_lshrrev_b32 v{t}, 3, v{t}
    v_xor_b32 v{r}, v{r}, v{t}
    v_and_b32 v{t}, 1, v{r}
    v_lshl_add_u32 v{d}, v{t}, 14, v{d}
    v_bfe_u32 v{t}, v{r}, 1, 1
    v_lshl_add_u32 v{d}, v{t}, 12, v{d}
    ''')
def s_msg(a, d, w, t):
    a(f's_lshr_b32 s{t}, s{w}, 1'); a(f's_add_u32 s{t}, s{t}, 24'); a(f's_lshl_b32 s{t}, s{t}, 16')
    a(f's_and_b32 s{d}, s{w}, 1'); a(f's_lshl_b32 s{d}, s{d}, 14'); a(f's_add_u32 s{d}, s{d}, s{t}')
def both_halves(a, f):
    for p in (0, -1):
        a(f's_mov_b32 s{S_PAR}, {p}'); f()
def calibrate(a, T):
    done = a.lab('cal'); lp = a.lab('calp'); nw = a.lab('calw')
    a(f's_cmp_ge_u32 s{S_H}, 32'); a(f's_cbranch_scc1 {done}')
    a(f's_xor_b32 s32, s{S_H}, s{S_WAVE}'); a('s_mov_b32 s30, 31'); s_page(a, 64, 32, 30, 31)
    a(f"""
    s_lshl_b32 s30, s{S_H}, 21
    s_add_u32 s64, s64, s30
    s_add_u32 s65, s64, 8192
    s_mov_b32 s39, {int(a.opt.get('clamp', 700))}
    s_mov_b32 s66, -1
    s_mov_b32 s67, -1
    s_mov_b32 s68, 0
    v_mov_b32 v{T}, 0
    s_mov_b64 exec, 1
    """)
    a.waitf(vm=0)
    a.label(lp)
    for h in range(2):
        a(f'v_mov_b32 v{T+1}, 0')
        a('s_memtime s[70:71]'); a.waitf(lg=0)
        a(f'buffer_atomic_add v{T+1}, v{T}, s[{WS}:{WS+3}], s{64+h} offen sc0 sc1')
        a.waitf(vm=0)
        a('s_memtime s[72:73]'); a.waitf(lg=0)
        a('s_sub_u32 s70, s72, s70'); a(f's_min_u32 s{66+h}, s{66+h}, s70')
    a(f"""
    s_add_u32 s68, s68, 1
    s_cmp_lt_u32 s68, {int(a.opt.get('caln', 5))}
    s_cbranch_scc1 {lp}
    s_lshl_b32 s30, s{S_WAVE}, 3
    v_mov_b32 v{T}, s30
    v_mov_b32 v{T+2}, s66
    v_mov_b32 v{T+3}, s67
    ds_write_b64 v{T}, {vr(T+2,2)}
    s_mov_b64 exec, -1
    """)
    a.waitf(lg=0)
    a('s_barrier')
    a(f's_cmp_lg_u32 s{S_WAVE}, 0'); a(f's_cbranch_scc1 {done}')
    a(f"""
    v_lshlrev_b32 v{T}, 3, v{V_LANE}
    ds_read_b64 v[32:33], v{T}
    v_lshlrev_b32 v{T}, 2, v{V_LANE}
    v_min3_u32 v34, v32, v33, s39
    s_mov_b64 exec, 15
    buffer_atomic_add v34, v{T}, s[{DBG}:{DBG+3}], 0 offen offset:32 sc1
    s_mov_b64 exec, -1
    v_mov_b32 v{T}, 0
    ds_read_b128 v[24:27], v{T}
    ds_read_b128 v[28:31], v{T} offset:16
    v_min3_u32 v24, v24, v26, v28
    v_min3_u32 v25, v25, v27, v29
    v_min_u32 v24, v24, v30
    v_min_u32 v25, v25, v31
    v_readfirstlane_b32 s66, v24
    v_readfirstlane_b32 s67, v25
    s_mov_b64 exec, 1
    s_cmp_lt_u32 s67, s66
    s_cselect_b32 s68, 1, 0
    s_min_u32 s69, s66, s67
    s_max_u32 s70, s66, s67
    s_mul_i32 s71, s69, 5
    s_lshl_b32 s70, s70, 2
    s_cmp_lt_u32 s71, s70
    s_cselect_b32 s70, 1, 0
    s_cmp_lt_u32 s69, 760
    s_cselect_b32 s70, s70, 0
    s_lshl_b32 s68, s68, s{S_H}
    s_lshl_b32 s70, s70, s{S_H}
    v_mov_b32 v{T+2}, s68
    v_mov_b32 v{T+3}, s70
    v_mov_b32 v{T}, 24
    buffer_atomic_or_x2 {vr(T+2,2)}, v{T}, s[{DBG}:{DBG+3}], 0 offen sc1
    """)
    if a.opt.get('ts'):
        a(f's_lshl_b32 s68, s{S_H}, 2'); a(f's_add_u32 s68, s68, {TS_BASE + 3*MB}'); a('s_lshl_b32 s67, s67, 16'); a('s_or_b32 s66, s66, s67')
        a(f'v_mov_b32 v{T}, s68'); a(f'v_mov_b32 v{T+1}, s66'); a(f'buffer_store_dword v{T+1}, v{T}, s[{WS}:{WS+3}], 0 offen sc1')
        a('s_mov_b64 exec, 15'); a(f's_lshl_b32 s68, s{S_H}, 4'); a(f's_add_u32 s68, s68, {TS_BASE + 3*MB + 1024}'); a(f'v_lshlrev_b32 v{T}, 2, v{V_LANE}'); a('v_min_u32 v34, v32, v33')
        a(f'buffer_store_dword v34, v{T}, s[{WS}:{WS+3}], s68 offen sc1')
    a('s_mov_b64 exec, -1')
    a.label(done)

def maxtree(a, dst, regs):
    regs = list(regs); acc = [None, None]; k = 0
    while regs:
        d = dst + k
        if acc[k] is None:
            t = regs[:3]; regs = regs[3:]
            if len(t) == 3: a(f'v_max3_u32 v{d}, v{t[0]}, v{t[1]}, v{t[2]}')
            elif len(t) == 2: a(f'v_max_u32 v{d}, v{t[0]}, v{t[1]}')
            else: a(f'v_mov_b32 v{d}, v{t[0]}')
            acc[k] = d
        else:
            t = regs[:2]; regs = regs[2:]
            if len(t) == 2: a(f'v_max3_u32 v{d}, v{d}, v{t[0]}, v{t[1]}')
            else: a(f'v_max_u32 v{d}, v{d}, v{t[0]}')
        k ^= 1
    if acc[1] is not None: a(f'v_max_u32 v{dst}, v{dst}, v{dst+1}')

def poll(a, loads, regs, vt, stem):
    l = a.lab(stem)
    a('s_mov_b32 s31, 0')
    a.vm = []
    a.label(l)
    for x in loads: a(x)
    a(f's_add_u32 s31, s31, 1'); a(f's_cmp_gt_u32 s31, {SPIN_MAX}')
    a.branch('s_cbranch_scc1 L_abort', nofence=True)
    maxtree(a, vt, regs)
    a(f'v_cmp_eq_u32 vcc, -1, v{vt}')
    assert not a.vm
    a.branch(f's_cbranch_vccnz {l}', nofence=True)

def allred(op, x, t):
    return [f'v_mov_b32 v{t}, v{x}', f'v_permlane32_swap_b32 v{x}, v{t}', f'{op} v{x}, v{x}, v{t}',
            f'v_mov_b32 v{t}, v{x}', f'v_permlane16_swap_b32 v{x}, v{t}', f'{op} v{x}, v{x}, v{t}']

class Sched:
    def __init__(s, n): s.n = n; s.side = {}; s.v = [0] * n; s.w = [0] * n; s.tail = []
    @staticmethod
    def cls(x):
        if callable(x): return 0, 0
        op = x.split()[0]
        if op.startswith('v_mfma'): return 0, 0
        if op.startswith('v_'): return 1, 0
        if op in ('ds_write_b64', 'ds_write_b128') or op.startswith('buffer_store'): return 0, 2
        if op.startswith(('ds_', 'buffer_')): return 0, 1
        return 0, 0
    def put(s, g, l):
        for x in l:
            v, w = s.cls(x); s.v[g] += v; s.w[g] += w; s.side.setdefault(g, []).append(x)
    def chain(s, g, items, deadline=None):
        for it in items:
            x, d = it if isinstance(it, tuple) else (it, 0)
            g += d; v, w = s.cls(x)
            while g < s.n and (s.v[g] + v > 1 or s.w[g] + w > 2): g += 1
            if g >= s.n: s.tail.append(x)
            else: s.put(g, [x])
        assert deadline is None or g <= deadline, (items, g, deadline)
        return g
    def group(s, g, l):
        v = sum(s.cls(x)[0] for x in l); w = sum(s.cls(x)[1] for x in l)
        while s.v[g] + v > 1 or s.w[g] + w > 2: g += 1
        s.put(g, l); return g
class Units:
    def __init__(s, order, in_lds, stg, vwl):
        s.loc = {}; s.ldsn = {}; nreg = 0
        for pos, u in enumerate(order):
            if pos in in_lds: s.ldsn[u] = len(s.ldsn)
            else:
                s.loc[u] = 256 + 8 * nreg if nreg < 32 else WORK + 8 * (nreg - 32); nreg += 1
        assert len(s.ldsn) == NL and nreg == 60 - NL
        s.stg, s.vwl = stg, vwl
    def reg(s, u): return s.loc[u] if u in s.loc else s.stg + 8 * (s.ldsn[u] % 3)
    def fetch(s, n):
        if n >= NL: return []
        b = s.stg + 8 * (n % 3)
        return [f'ds_read_b128 {vr(b + 4*i, 4)}, v{s.vwl} offset:{n*2048 + i*1024}' for i in range(2)]
    def after(s, u): return s.fetch(s.ldsn[u] + 3) if u in s.ldsn else []
    def stage(s, S, order):
        pos = {u: p for p, u in enumerate(order)}
        use = sorted(pos[u] for u in s.ldsn)
        for n in range(3, NL): S.chain(use[n - 3], s.fetch(n), deadline=use[n] - 5)
    def hold(s, base):
        return lambda u: s.loc[u] if u in s.loc else base + 8 * s.ldsn[u]
    def park(s, a, base):
        for n in range(NL):
            for i in range(2): a(f'ds_write_b128 v{s.vwl}, {vr(base + 8*n + 4*i, 4)} offset:{n*2048 + i*1024}')
        a.waitf(lg=0)

def h_setup(a, VG, VWL, VRD, IDX):
    a('s_mov_b32 s30, 0'); s_page(a, 31, S_SLOT, 30, 32)
    a(f'''
    v_lshlrev_b32 v{VG}, 4, v{V_TID}
    v_add_u32 v{VG+3}, {L_MEM}, v{VG}
    v_add_u32 v{VG}, s31, v{VG}
    v_add_u32 v{VG+1}, 65536, v{VG}
    s_add_u32 s31, s31, 131072
    v_lshl_add_u32 v{VG+2}, v{V_TID}, 3, s31
    v_lshlrev_b32 v{VG+4}, 3, v{V_TID}
    v_add_u32 v{VG+4}, {L_MEM + 8192}, v{VG+4}
    s_mul_i32 s30, s{S_WAVE}, {WL_SZ}
    v_lshl_add_u32 v{VWL}, v{V_LANE}, 4, s30
    v_lshlrev_b32 v{VRD}, 4, v{V_LANE}
    v_add_u32 v{VRD}, {L_MEM}, v{VRD}
    v_and_b32 v{IDX}, 8, v{V_LANE}
    v_cmp_eq_u32 vcc, 0, v{IDX}
    v_mov_b32 v{IDX}, 0xeeee
    v_mov_b32 v{IDX+1}, 0x4444
    v_cndmask_b32 v{IDX}, v{IDX}, v{IDX+1}, vcc
    ''')
def gather_mem(a, VG, VRD, AF, vt):
    L = AF + 16
    l = a.lab('gm')
    a('s_mov_b32 s31, 0')
    a.waitf(lg=0)
    a.vm = []; a.label(l)
    if int(a.opt.get('hsl', 0)): a(f's_sleep {a.opt["hsl"]}')
    a(f'''
    buffer_load_dwordx4 {vr(L,4)}, v{VG}, s[{WS}:{WS+3}], s{S_BASE} offen sc1
    buffer_load_dwordx4 {vr(L+4,4)}, v{VG+1}, s[{WS}:{WS+3}], s{S_BASE} offen sc1
    buffer_load_dwordx2 {vr(L+8,2)}, v{VG+2}, s[{WS}:{WS+3}], s{S_BASE} offen sc1
    s_add_u32 s31, s31, 1
    s_cmp_gt_u32 s31, {SPIN_MAX}
    ''')
    a.branch('s_cbranch_scc1 L_abort', nofence=True)
    wr = [f'ds_write_b128 v{VG+3}, {vr(L,4)}', f'ds_write_b128 v{VG+3}, {vr(L+4,4)} offset:4096', f'ds_write_b64 v{VG+4}, {vr(L+8,2)}']
    sp = int(a.opt.get('spw', 1))
    if sp: a(wr[0])
    a(f'v_max3_u32 v{vt}, v{L}, v{L+1}, v{L+2}')
    if sp: a(wr[1])
    a(f'v_max3_u32 v{vt+1}, v{L+3}, v{L+4}, v{L+5}'); a(f'v_max3_u32 v{vt}, v{vt}, v{L+6}, v{L+7}')
    if sp: a(wr[2])
    a(f'v_max3_u32 v{vt+1}, v{vt+1}, v{L+8}, v{L+9}'); a(f'v_max_u32 v{vt}, v{vt}, v{vt+1}')
    a(f'v_cmp_eq_u32 vcc, -1, v{vt}')
    assert not a.vm
    a.branch(f's_cbranch_vccnz {l}', nofence=True)
    if not sp: [a(x) for x in wr]
    if a.opt.get('ts'): a('s_mov_b32 s92, s31')
    tick(a, 0)
    a.waitf(lg=0)
    a('s_barrier')
    tick(a, 1)
    rd = [f'ds_read_b128 {vr(AF + 4*t, 4)}, v{VRD} offset:{t*1024}' for t in range(10)]
    n = int(a.opt.get('n0', 4))
    for x in rd[:n]: a(x)
    return rd[n:]
def sm(acc, A, B, IDX): return f'v_smfmac_f32_16x16x64_bf16 {vr(acc,4)}, {vr(A,4)}, {ur(B,8)}, v{IDX}'
def flag_addr(a, v):
    a(f'''
    s_lshl_b32 s30, s{S_ROLE}, 7
    s_lshl_b32 s31, s{S_WAVE}, 2
    s_add_u32 s30, s30, s31
    s_add_u32 s30, s30, {FL_BASE}
    v_mov_b32 v{v}, s30
    ''')
def flag_store(a, vaddr, vt, sval, so=0):
    a(f'v_mov_b32 v{vt}, {sval}'); a('s_mov_b64 exec, 1')
    a(f'buffer_store_dword v{vt}, v{vaddr}, s[{WS}:{WS+3}], {so} offen sc1'); a('s_mov_b64 exec, -1')
def need_flag4(a, sseen, sneed, sline, vt, vz, want=None):
    ok = a.lab('fok'); lp = a.lab('fpl')
    a(f's_cmp_gt_u32 s{sseen}, s{want or sneed}'); a(f's_cbranch_scc1 {ok}')
    a('s_mov_b32 s31, 0')
    a.label(lp)
    a(f'''
    buffer_load_dwordx4 {vr(vt,4)}, v{vz}, s[{WS}:{WS+3}], s{sline} offen sc1
    s_add_u32 s31, s31, 1
    s_cmp_gt_u32 s31, {SPIN_MAX}
    s_cbranch_scc1 L_abort
    v_min_u32 v{vt}, v{vt}, v{vt+1}
    v_min3_u32 v{vt}, v{vt}, v{vt+2}, v{vt+3}
    v_readfirstlane_b32 s{sseen}, v{vt}
    s_cmp_le_u32 s{sseen}, s{sneed}
    s_cbranch_scc1 {lp}
    ''')
    a.label(ok)


def tick(a, i, force=False):
    if a.opt.get('tp') and not force and i not in (1, 4): return
    if a.opt.get('ts'): a.raw(f'    {"s_memtime" if a.opt.get("tp") else "s_memrealtime"} s[{80+2*i}:{81+2*i}]')
def tick_out(a, n, v):
    if not a.opt.get('ts'): return
    if a.opt.get('tp'): n = 7
    a.waitf(lg=0)
    for i in range(n): a(f'v_writelane_b32 v{v}, s{80+2*i}, {i}')
    a(f'''
    s_lshl_b32 s30, s{S_ROLE}, 13
    s_lshl_b32 s31, s{S_WAVE}, 11
    s_add_u32 s30, s30, s31
    s_lshl_b32 s31, s{S_STEP}, 5
    s_add_u32 s30, s30, s31
    s_add_u32 s30, s30, {TS_BASE + 4*MB}
    v_lshlrev_b32 v{v+1}, 2, v{V_LANE}
    s_mov_b64 exec, 0xff
    buffer_store_dword v{v}, v{v+1}, s[{WS}:{WS+3}], s30 offen
    s_mov_b64 exec, -1
    ''')
def wait_writes(a):
    n = 0
    for d, src in reversed(a.lg):
        if src.startswith('ds_write'): break
        n += 1
    a.waitf(lg=min(n, 15))
def tp_put(a, put, lo, hi):
    if a.opt.get('tp'):
        for slot, p in zip((0, 2, 3, 5, 6), a.opt['tp'].split('_')):
            if lo <= int(p) < hi: put(int(p) - lo, [lambda slot=slot: tick(a, slot, True)])
def tp_at(a, p):
    if a.opt.get('tp'):
        for slot, q in zip((0, 2, 3, 5, 6), a.opt['tp'].split('_')):
            if int(q) == p: tick(a, slot, True)
def smark(a, i):
    if not a.opt.get('ts'): return
    a('s_memrealtime s[98:99]'); a.waitf(lg=0); a(f's_mov_b32 s{94+i}, s98')
def smark_out(a, v, n):
    if not a.opt.get('ts'): return
    for i in range(n): a(f'v_writelane_b32 v{v}, s{94+i}, {i}')
    a(f"""
    s_lshl_b32 s30, s{S_ROLE}, 12
    s_lshl_b32 s31, s{S_WAVE}, 10
    s_add_u32 s30, s30, s31
    s_add_u32 s30, s30, {TS_BASE + 768}
    v_lshlrev_b32 v{v+1}, 2, v{V_LANE}
    buffer_store_dword v{v}, v{v+1}, s[{WS}:{WS+3}], s30 offen
    """)

def role_b(a):
    a.c('===== B: v = mem Wv[h], Z = v Wo[h] =====')
    a(f's_sub_u32 s{S_H}, s{S_ROLE}, {R_B}')
    srd(a, SA, 'Wv', 640 * 12288); srd(a, SB, 'Wo', 32 * 245760)
    a.waitf(lg=0)
    smark(a, 0)
    VG, VWL, VRD, IDX, VZ4, VZ2, VIW, VIW3, VIR, VFL, T = 2, 7, 8, 9, 11, 13, 14, 15, 16, 10, 18
    ONES, AF, AV, STG, AZ = 20, 24, 64, 76, 100
    VA, PK = 120, 24
    def zaddr():
        a(f"""
        s_mul_i32 s30, s{S_WAVE}, 10
        s_and_b32 s31, s{S_H}, 15
        s_lshl_b32 s31, s31, 8
        s_lshr_b32 s32, s{S_H}, 4
        v_and_b32 v{T}, 15, v{V_LANE}
        v_lshl_add_u32 v{VZ4}, v{T}, 4, s31
        v_mov_b32 v{VZ4+1}, v{VZ4}
        v_bfe_u32 v{ONES}, v{V_LANE}, 4, 1
        v_lshl_add_u32 v{VZ2}, v{ONES}, 3, v{VZ4}
        v_lshrrev_b32 v{ONES+1}, 5, v{V_LANE}
        v_add_u32 v{ONES+1}, s30, v{ONES+1}
        v_lshl_add_u32 v{ONES+2}, v{ONES}, 1, v{ONES+1}
        v_add_u32 v{ONES+3}, 4, v{ONES+2}
        v_add_u32 v{ONES+1}, 8, v{ONES+1}
        """)
        v_zpage(a, VZ4, ONES + 2, T, 32); v_zpage(a, VZ4 + 1, ONES + 3, T, 32); v_zpage(a, VZ2, ONES + 1, T, 32)
    arrive0(a, T)
    a(f's_mov_b32 s{S_STEP}, 0')
    ALT = int(a.opt.get('alt', 2)); ZE = int(a.opt.get('ze', 3))
    order = [('v', j, t) for t in range(ALT) for j in (0, 1)] + [('v', j, t) for j in (0, 1) for t in range(ALT, 10)] + [('v', 2, t) for t in range(10)]
    order += [('o', j, u) for u in (0, 1) for j in range(5)] + [('o', j, u) for u in (2, 3) for j in range(ZE)]
    order += [('o', j, u) for j in range(ZE) for u in (4, 5)] + [('o', j, u) for j in range(ZE, 5) for u in (2, 3, 4, 5)]
    def vtile_sreg(a, j, sd): a(f's_add_u32 s{sd}, s{S_WAVE}, {4*j}')
    U = Units(order, {3, 8, 13, 18, 22, 26, 30, 34, 38, 42, 46, 50, 54, 58}, STG, VWL)
    HB = WORK - 8 * NL; hold = U.hold(HB)
    a(f's_mul_i32 s41, s{S_H}, 384'); a(f's_mul_i32 s42, s{S_H}, 245760')
    load_weights(a, [WMat(SA, 12288, 24, 20, 2, True, vtile_sreg, lambda j, ks: hold(('v', j, ks >> 1)) + 4 * (ks & 1), 3),
                     WMat(SB, 1280, 80, 6, 1, False, dpair_sreg, lambda j, ks: hold(('o', j, ks)), 5, pair=True)], 2, sbase=[41, 42])
    h_setup(a, VG, VWL, VRD, IDX)
    U.park(a, HB)
    zaddr()
    a(f"""
    v_and_b32 v{T}, 15, v{V_LANE}
    v_lshlrev_b32 v{T}, 4, v{T}
    v_lshrrev_b32 v{T+1}, 1, v{V_LANE}
    v_xor_b32 v{T+1}, v{T+1}, v{V_LANE}
    v_and_b32 v{T+1}, 8, v{T+1}
    v_add_u32 v{T}, v{T}, v{T+1}
    v_lshrrev_b32 v{T+1}, 5, v{V_LANE}
    s_lshl_b32 s30, s{S_WAVE}, 8
    s_add_u32 s30, s30, {L_QI}
    v_lshl_add_u32 v{VIW3}, v{T+1}, 2, v{T}
    s_and_b32 s31, s{S_WAVE}, 1
    s_lshl_b32 s31, s31, 5
    v_xor_b32 v{VIW3}, s31, v{VIW3}
    v_add_u32 v{VIW3}, s30, v{VIW3}
    """)
    a(f"""
    v_lshrrev_b32 v{VIR}, 4, v{V_LANE}
    v_lshlrev_b32 v{VIR}, 6, v{VIR}
    v_bfe_u32 v{T}, v{V_LANE}, 3, 1
    v_lshl_add_u32 v{VIR}, v{T}, 8, v{VIR}
    v_lshl_add_u32 v{VIR}, v{T}, 5, v{VIR}
    v_bfe_u32 v{T}, v{V_LANE}, 2, 1
    v_lshl_add_u32 v{VIR}, v{T}, 4, v{VIR}
    v_lshrrev_b32 v{T}, 5, v{V_LANE}
    v_xor_b32 v{T}, v{T}, v{V_LANE}
    v_and_b32 v{T}, 1, v{T}
    v_lshl_add_u32 v{VIR}, v{T}, 3, v{VIR}
    v_add_u32 v{VIR}, {L_QI}, v{VIR}
    v_xor_b32 v{VIR+1}, 32, v{VIR}
    """)
    flag_addr(a, VFL)
    smark(a, 1)
    wait_all_arrived(a, T)
    smark(a, 2)
    smark_out(a, T, 3)
    for v in (VG, VG + 1, VG + 2, VZ4, VZ4 + 1, VZ2): a(f'v_xor_b32 v{v}, s{S_STK}, v{v}')
    step_base(a, S_BASE, S_STEP)
    a(f's_or_b32 s30, s{S_H}, s{S_WAVE}'); a(f's_cselect_b32 s47, {OOB}, 0')
    a.label('L_b_loop')
    for i in range(12): a(f'v_mov_b32 v{AV+i}, 0')
    for i in range(20): a(f'v_mov_b32 v{AZ+i}, 0')
    for n in range(3): [a(x) for x in U.fetch(n)]
    later = gather_mem(a, VG, VRD, AF, T)
    if int(a.opt.get('bsl', 0)): a(f's_sleep {a.opt["bsl"]}')
    main = [[sm((AV if u[0] == 'v' else AZ) + 4*u[1], (AF if u[0] == 'v' else VA) + 4*u[2], U.reg(u), IDX)] for u in order]
    S = Sched(60)
    S.chain(0, later)
    WB = [int(x) for x in a.opt.get('wb', '4_6_4').split('_')]; RB = int(a.opt.get('rb', 1)); FS = int(a.opt.get('fs', 3))
    for j, (done, need) in enumerate(((9 + ALT, 30), (19, 40), (29, 40 + 2*ZE))):
        d = AV + 4*j
        g = S.chain(done + FS, [f'v_permlane32_swap_b32 v{d}, v{d+2}', f'v_permlane32_swap_b32 v{d+1}, v{d+3}', f'v_add_f32 v{d}, v{d}, v{d+2}',
               f'v_add_f32 v{d+1}, v{d+1}, v{d+3}', f'v_cvt_pk_bf16_f32 v{d}, v{d}, v{d+1}', (f'ds_write_b32 v{VIW3}, v{d} offset:{j*1024}', 1),
               (lambda: wait_writes(a), WB[j]), 's_barrier'])
        S.chain(g + RB, [f'ds_read_b64_tr_b16 {vr(VA + 4*u + 2*i, 2)}, v{VIR + i} offset:{u*512}' for u in (2*j, 2*j + 1) for i in range(2)], deadline=need - 2)
    def pk(d0, d1, P): return [f'v_cvt_pk_bf16_f32 v{d0}, v{AZ+4*P}, v{AZ+4*P+1}', f'v_cvt_pk_bf16_f32 v{d1}, v{AZ+4*P+2}, v{AZ+4*P+3}']
    def sw(p): return [f'v_permlane16_swap_b32 v{p}, v{p+1}', f'v_permlane16_swap_b32 v{p+2}, v{p+3}']
    def st(p, grp): return f'buffer_store_dwordx4 {vr(p,4)}, v{VZ4+grp}, s[{WS}:{WS+3}], s{S_BASE} offen sc1'
    fin = {j: max(p for p, u in enumerate(order) if u[:2] == ('o', j)) for j in range(5)}
    g = S.chain(fin[0] + 3, pk(PK, PK + 2, 0)); g = S.chain(max(g, fin[1] + 3), pk(PK + 1, PK + 3, 1) + sw(PK) + [(st(PK, 0), 1)])
    g = S.chain(max(g, fin[2] + 3), pk(PK + 4, PK + 6, 2)); g = S.chain(max(g, fin[3] + 3), pk(PK + 5, PK + 7, 3) + sw(PK + 4) + [(st(PK + 4, 1), 1)])
    ztail = S.tail; S.tail = []
    U.stage(S, order)
    S.put(24, [lambda: tick(a, 2)])
    tp_put(a, S.put, 0, 60)
    assert not S.tail
    bx = int(a.opt.get('bx', 0))
    def drop(x):
        if callable(x): return False
        if bx & 1 and x.startswith('v_'): return True
        if bx & 2 and x.startswith('ds_read_b128') and f'v{VWL} ' in x: return True
        if bx & 4 and x.startswith('s_barrier'): return True
        if bx & 8 and x.startswith('ds_read_b64_tr'): return True
        if bx & 16 and x.startswith('ds_write'): return True
        return False
    S.side = {g: [x for x in l if not drop(x)] for g, l in S.side.items()}
    interleave2(a, main, S.side)
    for x in ztail[:-1] + pk(PK + 8, PK + 9, 4)[:1] + ztail[-1:] + pk(PK + 8, PK + 9, 4)[1:]: a(x)
    a(f'v_permlane16_swap_b32 v{PK+8}, v{PK+9}')
    a(f'buffer_store_dwordx2 {vr(PK+8,2)}, v{VZ2}, s[{WS}:{WS+3}], s{S_BASE} offen sc1')
    tick(a, 3); tick(a, 4)
    tick_out(a, 7, T)
    flag_store(a, VFL, T, f's{S_STEP}', 's47')
    a(f's_add_u32 s{S_STEP}, s{S_STEP}, 1')
    step_base(a, S_BASE, S_STEP)
    a(f's_cmp_lt_u32 s{S_STEP}, 64')
    a('s_cbranch_scc1 L_b_loop')
    a.waitf(vm=0)
    flag_store(a, VFL, T, f's{S_STEP}')
    a('s_branch L_end')

def role_r(a):
    a.c('===== R: next memory columns 16r..16r+15 from all heads =====')
    a(f's_sub_u32 s{S_H}, s{S_ROLE}, {R_R}')
    srd(a, SA, 'mem0', 10240)
    a.waitf(lg=0)
    smark(a, 0)
    VE, VP, VTG, VZ, VVO, VW, VRD, VM, VPF, IDX, T = 2, 4, 5, 7, 8, 10, 11, 12, 13, 14, 16
    EX, PM, ZF, TG, AC, VO, VAN = 24, 40, 44, 52, 56, 64, 6
    s_msg(a, 40, S_WAVE, 30)
    a(f's_lshr_b32 s30, s{S_H}, 2'); a('s_lshl_b32 s30, s30, 1'); a(f's_lshr_b32 s31, s{S_WAVE}, 1'); a('s_add_u32 s30, s30, s31'); a('s_add_u32 s30, s30, 3')
    s_page(a, 41, S_H, 30, 31)
    a(f's_lshr_b32 s30, s{S_H}, 4'); s_page(a, 42, S_WAVE, 30, 31)
    a(f"""
    v_bfe_u32 v{T}, v{V_LANE}, 3, 1         ; hf
    v_and_b32 v{T+1}, 7, v{V_LANE}          ; i
    v_lshrrev_b32 v{T+2}, 4, v{V_LANE}      ; g
    v_lshrrev_b32 v{T+3}, 5, v{V_LANE}
    v_mul_u32_u24 v{VE}, 768, v{T+3}
    v_and_b32 v{T+3}, 31, v{V_LANE}
    v_lshl_add_u32 v{VE}, v{T+3}, 4, v{VE}
    v_add_u32 v{VE}, s40, v{VE}
    v_add_u32 v{VE+1}, 3072, v{VE}
    v_mul_u32_u24 v{VP}, 1536, v{T+2}
    v_lshl_add_u32 v{VP}, v{T}, 6, v{VP}
    v_lshl_add_u32 v{VP}, v{T+1}, 3, v{VP}
    v_add_u32 v{VP}, s40, v{VP}
    v_and_b32 v{T+3}, 1, v{T+2}
    s_and_b32 s31, s{S_WAVE}, 1
    s_lshl_b32 s31, s31, 11
    s_add_u32 s30, s41, s31
    v_lshl_add_u32 v{VZ}, v{V_LANE}, 4, s30
    s_lshl_b32 s30, s{S_H}, 15
    s_lshl_b32 s31, s{S_WAVE}, 13
    s_add_u32 s30, s30, s31
    v_lshl_add_u32 v{VVO}, v{V_LANE}, 4, s30
    v_add_u32 v{VVO+1}, 4096, v{VVO}
    v_lshlrev_b32 v{VW}, 8, v{T+3}
    v_lshrrev_b32 v{T+3}, 5, v{V_LANE}
    v_lshl_add_u32 v{VW}, v{T+3}, 7, v{VW}
    v_and_b32 v{T+3}, 15, v{V_LANE}
    v_lshl_add_u32 v{VW}, v{T+3}, 2, v{VW}
    s_lshl_b32 s30, s{S_WAVE}, 9
    v_add_u32 v{VW}, s30, v{VW}
    v_bfe_u32 v{T}, v{V_LANE}, 2, 3
    v_and_b32 v{T+1}, 3, v{V_LANE}
    v_lshrrev_b32 v{T+2}, 5, v{V_LANE}
    v_lshl_add_u32 v{T+1}, v{T+1}, 1, v{T+2}
    v_lshlrev_b32 v{VRD}, 6, v{T}
    v_lshl_add_u32 v{VRD}, v{T+1}, 3, v{VRD}
    s_and_b32 s30, s{S_H}, 15
    s_lshl_b32 s30, s30, 8
    s_add_u32 s30, s30, s42
    v_lshl_add_u32 v{VM}, v{V_LANE}, 2, s30
    v_mul_u32_u24 v{T}, 1280, v{T}
    v_lshl_add_u32 v{T}, v{T+1}, 2, v{T}
    s_lshl_b32 s30, s{S_H}, 5
    buffer_load_dword v{T+4}, v{T}, s[{SA}:{SA+3}], s30 offen
    s_mul_i32 s30, s{S_H}, 6554
    s_lshr_b32 s30, s30, 16
    s_lshl_b32 s30, s30, 2
    s_lshl_b32 s31, s{S_WAVE}, 10
    s_add_u32 s30, s30, s31
    s_add_u32 s30, s30, {flag_off(R_VO)}
    v_and_b32 v{T}, 7, v{V_LANE}
    v_lshl_add_u32 v{VPF}, v{T}, 7, s30
    v_and_b32 v{IDX}, 8, v{V_LANE}
    v_cmp_eq_u32 vcc, 0, v{IDX}
    v_mov_b32 v{IDX}, 0xeeee
    v_mov_b32 v{IDX+1}, 0x4444
    v_cndmask_b32 v{IDX}, v{IDX}, v{IDX+1}, vcc
    v_mov_b32 v{T+5}, -1
    """)
    assert all((r * 6554) >> 16 == r // 10 for r in range(40))
    ONE = VTG; ON4 = 96; VMW = VM
    a(f'v_mov_b32 v{ONE}, -1')
    for p in (0, 8192):
        a(f's_mov_b32 s30, {p}'); a(f'buffer_store_dword v{T+4}, v{VM}, s[{WS}:{WS+3}], s30 offen sc1')
        a(f's_mov_b32 s30, {p + 32768}'); a(f'buffer_store_dword v{ONE}, v{VM}, s[{WS}:{WS+3}], s30 offen sc1')
    for i in range(4): a(f'v_mov_b32 v{ON4+i}, -1')
    def zclear(sreg):
        for i in range(2): a(f'buffer_store_dwordx4 {vr(ON4,4)}, v{VZ}, s[{WS}:{WS+3}], s{sreg} offen offset:{i*1024} sc1')
    for p in (0, 8192): a(f's_mov_b32 s30, {p}'); zclear(30)
    arrive(a, T)
    calibrate(a, T)
    smark(a, 2)
    a.waitf(vm=0)
    count_in(a, T, 12)
    wait_all_arrived(a, T)
    smark(a, 1)
    smark_out(a, T, 3)
    for v in (VZ, VM): a(f'v_xor_b32 v{v}, s{S_STK}, v{v}')
    a(f's_mov_b32 s{S_STEP}, 0'); a(f's_mov_b32 s57, {64 if a.opt.get("noflag") else 0}'); a(f's_mov_b32 s50, {VO_BASE}'); a('s_mov_b32 s51, 0')
    a.label('L_r_loop')
    step_base(a, S_B2, S_STEP, 2)
    a(f's_cmp_lt_u32 s{S_STEP}, 62'); a(f's_cselect_b32 s{S_B2}, s{S_B2}, {OOB}')
    a(f's_mov_b32 s52, s{S_B2}')
    step_base(a, S_BASE, S_STEP)
    step_base(a, S_B2, S_STEP, 1)
    ok = a.lab('rok'); lp = a.lab('rpl')
    a(f's_cmp_gt_u32 s57, s{S_STEP}'); a(f's_cbranch_scc1 {ok}')
    a('s_mov_b32 s31, 0')
    a.label(lp)
    a(f"""
    buffer_load_dword v{T}, v{VPF}, s[{WS}:{WS+3}], 0 offen sc1
    s_add_u32 s31, s31, 1
    s_cmp_gt_u32 s31, {SPIN_MAX}
    s_cbranch_scc1 L_abort
    v_min_u32_dpp v{T}, v{T}, v{T} row_ror:4 row_mask:0xf bank_mask:0xf
    v_min_u32_dpp v{T}, v{T}, v{T} row_ror:2 row_mask:0xf bank_mask:0xf
    v_min_u32_dpp v{T}, v{T}, v{T} row_ror:1 row_mask:0xf bank_mask:0xf
    v_readfirstlane_b32 s57, v{T}
    s_cmp_le_u32 s57, s{S_STEP}
    s_cbranch_scc1 {lp}
    """)
    a.label(ok)
    for k in range(8):
        a(f'buffer_load_dwordx4 {vr(VO + 4*k, 4)}, v{VVO + k // 4}, s[{WS}:{WS+3}], s50 offen offset:{(k % 4) * 1024} sc1')
    for i in range(4): a(f'v_mov_b32 v{AC+i}, 0')
    a(f'v_add_u32 v{T+2}, s51, v{VW}'); a(f'v_add_u32 v{T+3}, s51, v{VRD}')
    tick(a, 6)
    a(f'buffer_store_dword v{ONE}, v{VMW}, s[{WS}:{WS+3}], s52 offen sc1')
    zclear(S_B2)
    ldE = [f'buffer_load_dwordx4 {vr(EX + 4*u, 4)}, v{VE + u // 2}, s[{WS}:{WS+3}], s{S_BASE} offen offset:{(u % 2) * 1536} sc1' for u in range(4)]
    ldZ = [f'buffer_load_dwordx4 {vr(ZF + 4*i, 4)}, v{VZ}, s[{WS}:{WS+3}], s{S_BASE} offen offset:{i*1024} sc1' for i in range(2)]
    ldL = [f'buffer_load_dwordx2 {vr(PM + 2*i, 2)}, v{VP}, s[{WS}:{WS+3}], s{S_BASE} offen offset:{512 + 768*i} sc1' for i in range(2)]
    def mx(e): a(f'v_max3_u32 v{T}, v{T}, v{e}, v{e+1}'); a(f'v_max3_u32 v{T+1}, v{T+1}, v{e+2}, v{e+3}')
    lp, go = a.lab('rq'), a.lab('rgo')
    poll(a, ([f's_sleep {a.opt["zsl"]}'] if int(a.opt.get('zsl', 0)) else []) + ldZ, range(ZF, ZF + 8), T, 'pz')
    tick(a, 0)
    a.vm = []; a.label(lp)
    for x in ldL + ldE: a(x)
    a('s_add_u32 s31, s31, 1'); a(f's_cmp_gt_u32 s31, {SPIN_MAX}'); a.branch('s_cbranch_scc1 L_abort', nofence=True)
    a(sm(AC, PM, ZF, IDX))
    a(f'v_max_u32 v{T}, v{PM}, v{PM+1}'); a(f'v_max_u32 v{T+1}, v{PM+2}, v{PM+3}')
    for u in range(4):
        a(sm(AC, EX + 4*u, VO + 8*u, IDX)); mx(EX + 4*u)
    a(f'v_max_u32 v{T}, v{T}, v{T+1}')
    a(f'v_cmp_eq_u32 vcc, -1, v{T}')
    assert not a.vm
    keep = list(a.hist)
    a.branch(f's_cbranch_vccz {go}', nofence=True)
    for i in range(4): a(f'v_mov_b32 v{AC+i}, 0')
    if a.opt.get('ts'): a('s_add_u32 s31, s31, 1000')
    a(f's_branch {lp}')
    a.label(go, fresh=True)
    a.hist = keep + [Ins('s_nop 0')]
    tick(a, 2)
    if a.opt.get('ts'): a('s_mov_b32 s90, s31')
    a(f"""
    v_permlane32_swap_b32 v{AC}, v{AC+2}
    v_permlane32_swap_b32 v{AC+1}, v{AC+3}
    v_add_f32 v{AC}, v{AC}, v{AC+2}
    v_add_f32 v{AC+1}, v{AC+1}, v{AC+3}
    ds_write2_b32 v{T+2}, v{AC}, v{AC+1} offset0:0 offset1:16
    """)
    a.waitf(lg=0)
    a('s_barrier')
    tick(a, 3)
    a(f"""
    ds_read2_b64 {vr(EX,4)}, v{T+3} offset0:0 offset1:64
    ds_read2_b64 {vr(EX+4,4)}, v{T+3} offset0:128 offset1:192
    v_pk_add_f32 {vr(EX,2)}, {vr(EX,2)}, {vr(EX+2,2)}
    v_pk_add_f32 {vr(EX+4,2)}, {vr(EX+4,2)}, {vr(EX+6,2)}
    v_pk_add_f32 {vr(EX,2)}, {vr(EX,2)}, {vr(EX+4,2)}
    v_cvt_pk_bf16_f32 v{EX}, v{EX}, v{EX+1}
    buffer_store_dword v{EX}, v{VMW}, s[{WS}:{WS+3}], s{S_B2} offen sc1
    """)
    tick(a, 4); tick_out(a, 7, T)
    a(f"""
    s_xor_b32 s51, s51, 2048
    s_add_u32 s50, s50, {0 if a.opt.get('vohot') else 40*32768}
    s_add_u32 s{S_STEP}, s{S_STEP}, 1
    s_cmp_lt_u32 s{S_STEP}, 63
    s_cbranch_scc1 L_r_loop
    """)
    a.waitf(vm=0)
    a('s_branch L_end')

def role_c(a):
    a.c('===== C: q, k of the memory rows; scores and softmax of memory rows and segment rows =====')
    a(f's_mov_b32 s{S_H}, s{S_ROLE}')
    srd(a, SA, 'Wq', 640 * 12288); srd(a, SB, 'Wk', 640 * 12288)
    a.waitf(lg=0)
    smark(a, 0)
    VG, VWL, VRD, IDX, VIW, VIW3, VIR, VKX, A0, A1, A2, A3, VFL, T = 2, 7, 8, 9, 11, 12, 13, 14, 15, 16, 17, 18, 19, 20
    AF, AQ, AK, STG, SBF, Y, VT0, VT1, VPA, VWU = 24, 64, 76, 88, 112, 136, 140, 141, 142, 143
    assert int(a.opt.get('prep', 1)) == 1
    VZERO = 10
    assert VPA < WORK
    a(f's_lshr_b32 s31, s{S_H}, 3'); s_msg(a, 43, 31, 30)
    a(f"""
    s_and_b32 s30, s{S_H}, 7
    s_mul_i32 s30, s30, 768
    s_add_u32 s43, s43, s30
    """)
    PREP = int(a.opt.get('prep', 1))
    def clears():
        for i in range(4): a(f'v_mov_b32 v{AF+i}, -1')
        a(f'v_lshl_add_u32 v{T+2}, v{V_LANE}, 4, s43'); a('s_mov_b32 exec_hi, 0xff')
        for p in (0, 8192, 32768, 32768 + 8192):
            a(f's_mov_b32 s30, {p}'); a(f'buffer_store_dwordx4 {vr(AF,4)}, v{T+2}, s[{WS}:{WS+3}], s30 offen sc1')
        a('s_mov_b64 exec, -1')
    arrive0(a, T, clears)
    order = [('q', j, t) for t in range(10) for j in range(3)] + [('k', j, t) for j in range(3) for t in range(10)]
    U = Units(order, {4, 9, 14, 18, 22, 26, 30, 34, 38, 42, 46, 50, 54, 58}, STG, VWL)
    HB = WORK - 8 * NL; hold = U.hold(HB)
    a(f's_mul_i32 s41, s{S_H}, 384')
    load_weights(a, [WMat(SA, 12288, 24, 20, 2, True, etile_sreg, lambda j, ks: hold(('q', j, ks >> 1)) + 4 * (ks & 1), 3),
                     WMat(SB, 12288, 24, 20, 2, True, etile_sreg, lambda j, ks: hold(('k', j, ks >> 1)) + 4 * (ks & 1), 3)], 2, sbase=[41, 41])
    h_setup(a, VG, VWL, VRD, IDX)
    U.park(a, HB)
    a(f"""
    v_mov_b32 v{VZERO}, 0
    v_and_b32 v{T}, 15, v{V_LANE}
    v_lshrrev_b32 v{T+1}, 4, v{V_LANE}
    v_lshrrev_b32 v{T+2}, 2, v{T}
    v_xor_b32 v{T+3}, v{T+2}, v{T+1}
    v_lshlrev_b32 v{T+2}, 5, v{T}
    v_lshl_add_u32 v{T+2}, v{T+3}, 3, v{T+2}
    s_lshl_b32 s30, s{S_WAVE}, 10
    s_add_u32 s30, s30, {L_QI}
    v_add_u32 v{VIW}, s30, v{T+2}
    s_lshl_b32 s30, s{S_WAVE}, 9
    s_add_u32 s30, s30, {L_QI + 4096}
    v_add_u32 v{VIW3}, s30, v{T+2}
    v_xor_b32 v{VIR}, v{V_LANE}, v{T+1}
    v_lshlrev_b32 v{VIR}, 3, v{VIR}
    v_add_u32 v{VIR}, {L_QI}, v{VIR}
    s_lshl_b32 s30, s{S_WAVE}, 10
    v_add_u32 v{VT0}, s30, v{VIR}
    s_lshl_b32 s30, s{S_WAVE}, 9
    v_add_u32 v{VT1}, s30, v{VIR}
    s_mov_b32 s44, {f32(CSC)}
    s_mov_b32 s45, {L_KX}
    s_mov_b32 s57, {64 if a.opt.get('noflag') else 0}
    s_mov_b32 s{S_STEP}, 0
    s_mul_i32 s50, s{S_H}, 12288
    """)
    flag_addr(a, VFL)
    smark(a, 1)
    wait_all_arrived(a, T)
    smark(a, 2)
    smark_out(a, T, 3)
    for v in (VG, VG + 1, VG + 2): a(f'v_xor_b32 v{v}, s{S_STK}, v{v}')
    step_base(a, S_BASE, S_STEP)
    a(f's_cmp_eq_u32 s{S_WAVE}, 1'); a('s_cbranch_scc1 L_c_d')
    a(f's_cmp_ge_u32 s{S_WAVE}, 2'); a('s_cbranch_scc1 L_c_x')

    def kx_dma(sbuf):
        for f in range(12):
            if f % 4 == 0: a(f's_add_u32 m0, s{sbuf}, {f*1024}'); a(f's_add_u32 s34, s50, {f*1024}')
            a(f'buffer_load_dwordx4 v{A0}, s[{WS}:{WS+3}], s34 offen offset:{(f % 4)*1024} sc1 lds')

    QF, Q3, KF = SBF, SBF + 4, SBF + 12
    def trq(d, ks, off): return [f'ds_read_b64_tr_b16 {vr(d + 2*i, 2)}, v{VIR} offset:{off + ks*1024 + i*512}' for i in range(2)]
    def img(acc, j, off):
        c = acc + 4*j
        return [f'v_cvt_pk_bf16_f32 v{c}, v{c}, v{c+1}', f'v_cvt_pk_bf16_f32 v{c+1}, v{c+2}, v{c+3}',
                f'ds_write_b64 v{VIW3 if j == 2 else VIW}, {vr(c,2)} offset:{off + (512 if j == 1 else 0)}']
    def passes(kind):
        for i in range(24): a(f'v_mov_b32 v{AQ+i}, 0')
        for i in (0, 1, 4, 5): a(f'v_mov_b32 v{Q3+i}, 0')
        for n in range(3): [a(x) for x in U.fetch(n)]
        a(f"""
        s_lshl_b32 s30, s{S_WAVE}, 10
        s_add_u32 s31, s30, s45
        v_lshl_add_u32 v{VKX}, v{V_LANE}, 4, s31
        s_xor_b32 s46, s45, {L_KX ^ (L_KX + 12288)}
        s_add_u32 s31, s30, s46
        v_lshl_add_u32 v{VPA}, v{V_LANE}, 4, s31
        """)
        later = gather_mem(a, VG, VRD, AF, T)
        main = [[sm((AQ if u[0] == 'q' else AK) + 4*u[1], AF + 4*u[2], U.reg(u), IDX)] for u in order]
        S = Sched(60)
        S.chain(0, later)
        S.chain(12, [f'ds_read_b128 {vr(KF,4)}, v{VKX}', (f'ds_read_b128 {vr(KF+4,4)}, v{VKX} offset:4096', 1), (f'ds_read_b128 {vr(KF+8,4)}, v{VKX} offset:8192', 1)])
        if kind == 'd':
            S.chain(5, [f'buffer_load_dword v{T+2}, v{VWU}, s[{WS}:{WS+3}], s49 offen sc1', (f'buffer_load_dword v{T+3}, v{VWU}, s[{WS}:{WS+3}], s48 offen sc1', 2)])
        if kind == 'm':
            S.group(6, ['s_mov_b32 exec_hi, 0xff', f'buffer_store_dwordx4 {vr(Y,4)}, v{A2}, s[{WS}:{WS+3}], s{S_B2} offen sc1', 's_mov_b64 exec, -1'])
        if kind == 'x':
            S.chain(5, [f'buffer_load_dword v{T+2}, v{VWU}, s[{WS}:{WS+3}], s50 offen sc1'])
        q = [img(AQ, j, 0) for j in range(3)]
        S.put(31, q[0][:2]); S.put(32, q[0][2:] + q[1][:2]); S.put(33, q[1][2:] + q[2][:2]); S.put(34, q[2][2:])
        g = S.chain(35, [f'ds_read_b64_tr_b16 {vr(QF,2)}, v{VT0}', f'ds_read_b64_tr_b16 {vr(QF+2,2)}, v{VT0} offset:512',
                         f'ds_read_b64_tr_b16 {vr(Q3+2,2)}, v{VT1} offset:4096'])
        PS = int(a.opt.get('ps', 41))
        S.put(PS, [f'v_mfma_f32_16x16x32_bf16 {vr(AQ,4)}, {vr(KF,4)}, {vr(QF,4)}, 0',
                 f'v_mfma_f32_16x16x32_bf16 {vr(AQ+4,4)}, {vr(KF+4,4)}, {vr(QF,4)}, 0',
                 img(AK, 0, 6144)[0],
                 f'v_mfma_f32_16x16x32_bf16 {vr(AQ,4)}, {vr(KF+8,4)}, {vr(Q3+2,4)}, {vr(AQ,4)}',
                 img(AK, 0, 6144)[1],
                 f'v_mfma_f32_16x16x32_bf16 {vr(AQ+4,4)}, {vr(KF+8,4)}, {vr(Q3,4)}, {vr(AQ+4,4)}'])
        S.chain(PS + 1, img(AK, 0, 6144)[2:])
        QE = int(a.opt.get('qe', 1))
        if QE: S.put(PS - 1, [lambda: wait_writes(a), 's_barrier'])
        fo = []
        for jt in range(2):
            for c in range(2):
                x0, x1 = AQ + 4*jt + c, AQ + 4*jt + 2 + c
                fo += [f'v_add_f32_dpp v{Y+2*jt+c}, v{x0}, v{x0} row_ror:8 row_mask:0xf bank_mask:0x3',
                       f'v_add_f32_dpp v{Y+2*jt+c}, v{x1}, v{x1} row_ror:8 row_mask:0xf bank_mask:0xc']
        fo = fo[0::2] + fo[1::2]
        g = S.chain(PS + 3, fo)
        l = img(AK, 1, 6144)
        S.put(g + 1, ([f'ds_write_b128 v{VPA}, {vr(Y,4)}'] if kind != 'm' else []) + l[:1])
        g = S.chain(g + 2, [l[1], (l[2], 1), (lambda: wait_writes(a), int(a.opt.get('cwb', 4))), 's_barrier', lambda: tick(a, 2)], deadline=59)
        U.stage(S, order)
        if kind == 'm' and QE:
            S.chain(PS + 2, [(x, 1) for ks in range(6) for x in trq(SBF + 4*ks, ks, 0)], deadline=58)
            S.chain(g + int(a.opt.get('crb', 1)), [f'ds_read_b128 {vr(AQ + 4*(w-1), 4)}, v{VPA} offset:{w*1024}' for w in (1, 2, 3)] + trq(AF, 0, 6144) + trq(AF + 4, 1, 6144))
        elif kind == 'm':
            S.chain(g + int(a.opt.get('crb', 1)), [f'ds_read_b128 {vr(AQ + 4*(w-1), 4)}, v{VPA} offset:{w*1024}' for w in (1, 2, 3)] + trq(AF, 0, 6144) + trq(SBF, 0, 0) + trq(AF + 4, 1, 6144) + trq(SBF + 4, 1, 0))
        tp_put(a, S.put, 0, 60)
        interleave2(a, main, S.side)
        for x in S.tail: a(x)
        for x in img(AK, 2, 6144): a(x)
    def tpk(p):
        if a.opt.get('tp'):
            for slot, q in zip((0, 2, 3, 5, 6), a.opt['tp'].split('_')):
                if int(q) == p: tick(a, slot, True)
    def bar2():
        wait_writes(a)
        a('s_barrier')
        tick(a, 3); tpk(61)
    def next_step(lab, fin=None):
        a(f"""
        s_mov_b32 s45, s46
        s_add_u32 s{S_STEP}, s{S_STEP}, 1
        """)
        step_base(a, S_BASE, S_STEP)
        a(f's_cmp_lt_u32 s{S_STEP}, 64')
        a(f's_cbranch_scc1 {lab}')
        a.waitf(vm=0)
        if fin: fin()
        a('s_branch L_end')

    a(f"""
    v_and_b32 v{T}, 15, v{V_LANE}
    v_lshrrev_b32 v{T+1}, 5, v{V_LANE}
    v_bfe_u32 v{T+3}, v{V_LANE}, 4, 1
    v_lshlrev_b32 v{A0}, 4, v{T}
    v_lshl_add_u32 v{A0}, v{T+1}, 8, v{A0}
    v_lshl_add_u32 v{A0}, v{T+3}, 3, v{A0}
    v_add_u32 v{A0}, s43, v{A0}
    v_and_b32 v{T+2}, 7, v{V_LANE}
    v_lshlrev_b32 v{A1}, 6, v{T+3}
    v_lshl_add_u32 v{A1}, v{T+2}, 3, v{A1}
    v_lshl_add_u32 v{A1}, v{T+1}, 2, v{A1}
    v_add_u32 v{A1}, s43, v{A1}
    """)
    a(f'v_lshl_add_u32 v{A2}, v{V_LANE}, 4, s43')
    flag_store(a, VFL, T, 64)
    a.label('L_c_m_loop')
    step_base(a, S_B2, S_STEP, 2)
    a(f's_cmp_lt_u32 s{S_STEP}, 62'); a(f's_cselect_b32 s{S_B2}, s{S_B2}, {OOB}')
    for i in range(4): a(f'v_mov_b32 v{Y+i}, -1')
    passes('m')
    tpk(60)
    MX, LX, M2, TT = T, T + 1, T + 2, T + 3
    mr = trq(AF + 8, 2, 6144) + trq(SBF + 8, 2, 0) + trq(AF + 12, 3, 6144) + trq(SBF + 12, 3, 0) + trq(SBF + 16, 4, 0) + trq(SBF + 20, 5, 0)
    if int(a.opt.get('qe', 1)): mr = trq(AF + 8, 2, 6144) + trq(AF + 12, 3, 6144)
    nm = int(a.opt.get('mr', 12))
    for x in mr[:nm]: a(x)
    sx = []
    if int(a.opt.get('pk', 1)):
        for d, x in ((Y, AQ), (AQ + 4, AQ + 8), (Y, AQ + 4)):
            for i in (0, 2): sx.append(f'v_pk_add_f32 {vr(d+i,2)}, {vr(d+i,2)}, {vr(x+i,2)}')
    else:
        for i in range(4): sx.append(f'v_add_f32 v{Y+i}, v{Y+i}, v{AQ+i}')
        for i in range(4): sx.append(f'v_add_f32 v{AQ+4+i}, v{AQ+4+i}, v{AQ+8+i}')
        for i in range(4): sx.append(f'v_add_f32 v{Y+i}, v{Y+i}, v{AQ+4+i}')
    sx += [f'v_max3_f32 v{MX}, v{Y}, v{Y+1}, v{Y+2}', f'v_max_f32 v{MX}, v{MX}, v{Y+3}',
           f'v_max_f32_dpp v{MX}, v{MX}, v{MX} row_ror:8 row_mask:0xf bank_mask:0xf']
    sx += allred('v_max_f32', MX, TT)
    sx += [f'v_mul_f32 v{M2}, s44, v{MX}']
    sx += [f'v_fma_f32 v{Y+i}, v{Y+i}, s44, -v{M2}' for i in range(4)]
    sx += [f'v_exp_f32 v{Y+i}, v{Y+i}' for i in range(4)]
    sx += [f'v_add_f32 v{LX}, v{Y}, v{Y+1}', f'v_add_f32 v{TT}, v{Y+2}, v{Y+3}', f'v_add_f32 v{LX}, v{LX}, v{TT}',
           f'v_add_f32_dpp v{LX}, v{LX}, v{LX} row_ror:8 row_mask:0xf bank_mask:0xf']
    n0 = int(a.opt.get('sx0', 6))
    for x in sx[:n0]: a(x)
    sx = sx[n0:]
    bar2()
    for x in trq(AF + 16, 4, 6144) + trq(AF + 20, 5, 6144) + mr[nm:]: a(x)
    N = AK
    slots = {int(x): k for k, x in enumerate(a.opt.get('sl', '0_2_4_7_14_15').split('_'))}
    for i, x in enumerate(sx):
        if i in slots:
            ks = slots[i]
            a(f'v_mfma_f32_16x16x32_bf16 {vr(N,4)}, {vr(AF + 4*ks, 4)}, {vr(SBF + 4*ks, 4)}, {vr(N,4) if ks else 0}')
        a(x)
    tpk(62)
    a(f"""
    v_permlane32_swap_b32 v{N}, v{N+2}
    v_permlane32_swap_b32 v{N+1}, v{N+3}
    v_add_f32 v{N}, v{N}, v{N+2}
    v_add_f32 v{N+1}, v{N+1}, v{N+3}
    v_add_f32_dpp v{N}, v{N}, v{N} row_ror:8 row_mask:0xf bank_mask:0xf
    v_add_f32_dpp v{N+1}, v{N+1}, v{N+1} row_ror:8 row_mask:0xf bank_mask:0xf
    v_fma_f32 v{N}, v{N}, s44, -v{M2}
    v_fma_f32 v{N+1}, v{N+1}, s44, -v{M2}
    v_max_f32 v{MX}, v{N}, v{N+1}
    v_cmp_lt_f32 vcc, {f32(float(a.opt.get('thr', 16)))}, v{MX}
    """)
    a._push(Ins('s_cbranch_vccnz L_c_resc')); a.raw('L_c_resc_back:')
    a(f"""
    v_exp_f32 v{N}, v{N}
    v_exp_f32 v{N+1}, v{N+1}
    v_add_f32 v{LX}, v{LX}, v{N}
    v_add_f32 v{M2}, v{LX}, v{N+1}
    v_add_f32 v{TT}, v{LX}, v{N+1}
    v_permlane32_swap_b32 v{M2}, v{TT}
    v_add_f32 v{MX}, v{M2}, v{TT}
    v_add_f32 v{TT}, v{M2}, v{TT}
    v_permlane16_swap_b32 v{MX}, v{TT}
    v_add_f32 v{M2}, v{MX}, v{TT}
    v_rcp_f32 v{M2}, v{M2}
    v_pk_mul_f32 {vr(N,2)}, {vr(N,2)}, {vr(M2,2)} op_sel_hi:[1,0]
    v_pk_mul_f32 {vr(Y,2)}, {vr(Y,2)}, {vr(M2,2)} op_sel_hi:[1,0]
    v_pk_mul_f32 {vr(Y+2,2)}, {vr(Y+2,2)}, {vr(M2,2)} op_sel_hi:[1,0]
    v_cvt_pk_bf16_f32 v{N}, v{N}, v{N+1}
    v_cvt_pk_bf16_f32 v{Y}, v{Y}, v{Y+1}
    v_cvt_pk_bf16_f32 v{Y+1}, v{Y+2}, v{Y+3}
    buffer_store_dword v{N}, v{A1}, s[{WS}:{WS+3}], s{S_BASE} offen offset:512 sc1
    """)
    if PREP == 4: a(f'buffer_store_dword v{N}, v{A1}, s[{WS}:{WS+3}], s65 offen offset:512 sc1')
    for c in range(PREP): a(f'buffer_store_dwordx2 {vr(Y,2)}, v{A0}, s[{WS}:{WS+3}], s{(S_BASE, 64, 65, 66)[c]} offen sc1')
    tick(a, 4); tick_out(a, 7, T)
    next_step('L_c_m_loop')
    a.saved['L_c_resc'] = ([], [], False); a.label('L_c_resc', fresh=True)
    a(f'v_max_f32 v{MX}, 0, v{MX}')
    for x in allred('v_max_f32', MX, TT): a(x)
    a(f"""
    v_sub_f32 v{N}, v{N}, v{MX}
    v_sub_f32 v{N+1}, v{N+1}, v{MX}
    v_exp_f32 v{MX}, -v{MX}
    v_mul_f32 v{LX}, v{LX}, v{MX}
    v_mul_f32 v{Y}, v{Y}, v{MX}
    v_mul_f32 v{Y+1}, v{Y+1}, v{MX}
    v_mul_f32 v{Y+2}, v{Y+2}, v{MX}
    v_mul_f32 v{Y+3}, v{Y+3}, v{MX}
    s_nop 1
    """)
    a._push(Ins('s_branch L_c_resc_back'))

    a.label('L_c_d', fresh=True)
    a(f"""
    v_lshlrev_b32 v{A0}, 4, v{V_LANE}
    v_add_u32 v{A1}, s43, v{A0}
    v_lshlrev_b32 v{VWU}, 7, v{V_LANE}
    s_add_u32 s50, s50, {QKV_BASE + QKV_SZ}
    s_lshl_b32 s56, s{S_H}, 7
    s_add_u32 s56, s56, {flag_off(R_PJ + 32)}
    """)
    flag_store(a, VFL, T, 64)
    need_flag4(a, 57, S_STEP, 56, T, VZERO)
    kx_dma(45)
    a.label('L_c_d_loop')
    a(f's_add_u32 s50, s50, {32*12288}')
    a(f's_add_u32 s58, s{S_STEP}, 1'); a('s_min_u32 s59, s58, 63')
    a('s_cmp_lt_u32 s58, 64'); a(f's_cselect_b32 s50, s50, {OOB}')
    a('s_cmp_gt_u32 s57, s59'); a(f's_cselect_b32 s49, s50, {OOB}')
    a('s_add_u32 s48, s49, 4096')
    passes('d'); bar2()
    a.waitf(vm=0)
    a('s_add_u32 s58, s59, 1'); a('s_min_u32 s58, s58, 63')
    need_flag4(a, 57, 59, 56, T, VZERO, want=58)
    if int(a.opt.get('kxd', 0)): a(f's_sleep {a.opt["kxd"]}')
    kx_dma(46)
    tick(a, 4); tick_out(a, 7, T)
    next_step('L_c_d_loop')

    a.label('L_c_x', fresh=True)
    a(f"""
    s_and_b32 s47, s{S_WAVE}, 1
    s_lshl_b32 s30, s47, 12
    v_lshl_add_u32 v{A0}, v{V_LANE}, 4, s30
    s_lshl_b32 s30, s47, 3
    s_add_u32 s30, s30, 8192
    v_lshl_add_u32 v{A1}, v{V_LANE}, 4, s30
    s_lshl_b32 s30, s47, 10
    v_lshl_add_u32 v{A2}, v{V_LANE}, 4, s30
    v_and_b32 v{T}, 15, v{V_LANE}
    v_lshrrev_b32 v{T+1}, 4, v{V_LANE}
    s_lshl_b32 s30, s47, 8
    s_add_u32 s30, s30, 2048
    v_lshl_add_u32 v{A3}, v{T}, 4, s30
    v_lshl_add_u32 v{A3}, v{T+1}, 2, v{A3}
    s_lshl_b32 s30, s47, 4
    v_add_u32 v{T}, s30, v{T}
    v_lshlrev_b32 v{T+1}, 2, v{T+1}
    v_sub_u32 v{T}, v{T}, v{T+1}
    s_lshl_b32 s30, s47, 12
    v_lshl_add_u32 v{VWU}, v{V_LANE}, 7, s30
    v_cmp_gt_u32 vcc, 32, v{V_LANE}
    v_lshlrev_b32 v{T+1}, 7, v{V_LANE}
    v_add_u32 v{T+1}, 4096, v{T+1}
    v_cndmask_b32 v{VWU}, v{T+1}, v{VWU}, vcc
    s_add_u32 s50, s50, {QKV_BASE}
    s_lshl_b32 s56, s{S_H}, 7
    s_add_u32 s56, s56, {flag_off(R_PJ)}
    s_mul_i32 s51, s{S_H}, 2560
    s_add_u32 s51, s51, {PX_BASE}
    """)
    for jt in range(2):
        for r in range(4): a(f'v_cmp_le_i32 s[{64+2*(4*jt+r)}:{65+2*(4*jt+r)}], {16*jt+r}, v{T}')
    a.label('L_c_x_loop')
    need_flag4(a, 57, S_STEP, 56, T, VZERO)
    passes('x')
    xl = [f'buffer_load_dwordx4 {vr(SBF + 4*ks, 4)}, v{A0}, s[{WS}:{WS+3}], s50 offen offset:{ks*1024} sc1' for ks in range(4)]
    nx = int(a.opt.get('xl', 0))
    for x in xl[:nx]: a(x)
    bar2()
    for x in xl[nx:]: a(x)
    for t in range(4): a(f'buffer_load_dwordx2 {vr(SBF + 16 + 2*t, 2)}, v{A1}, s[{WS}:{WS+3}], s50 offen offset:{t*1024} sc1')
    X = AQ; N = AQ + 8
    a(f'v_lshl_add_u32 v{T}, v{V_LANE}, 4, s45'); a(f'v_add_u32 v{T+1}, 8, v{T}')
    ops = []
    for ks in range(6):
        for jt in range(3):
            b = AF + 4 * (len(ops) % 10)
            if jt == 2: rd = [f'ds_read_b64_tr_b16 {vr(b + 2*i, 2)}, v{VIR} offset:{6144 + ks*1024 + i*512}' for i in range(2)]
            elif ks < 4: rd = [f'ds_read_b128 {vr(b,4)}, v{T} offset:{jt*4096 + ks*1024}']
            else: rd = [f'ds_read2st64_b64 {vr(b,4)}, v{T+jt} offset0:{16 + 4*(ks-4)} offset1:{18 + 4*(ks-4)}']
            c = vr(X + 4*jt, 4)
            ops.append((rd, f'v_mfma_f32_16x16x32_bf16 {c}, {vr(b,4)}, {vr(SBF + 4*ks, 4)}, {c if ks else 0}'))
    for i in range(9): [a(x) for x in ops[i][0]]
    for i in range(18):
        a(ops[i][1])
        if i + 9 < 18: [a(x) for x in ops[i + 9][0]]
    MX, SM, TT = T, T + 1, T + 3
    a(f'v_mov_b32 v{TT}, 0xf149f2ca')
    a(f"""
    v_permlane32_swap_b32 v{N}, v{N+2}
    v_permlane32_swap_b32 v{N+1}, v{N+3}
    v_add_f32 v{N}, v{N}, v{N+2}
    v_add_f32 v{N+1}, v{N+1}, v{N+3}
    """)
    for i in range(8): a(f'v_cndmask_b32 v{X+i}, v{TT}, v{X+i}, s[{64+2*i}:{65+2*i}]')
    a(f"""
    v_max3_f32 v{MX}, v{X}, v{X+1}, v{X+2}
    v_max3_f32 v{SM}, v{X+3}, v{X+4}, v{X+5}
    v_max3_f32 v{MX}, v{MX}, v{X+6}, v{X+7}
    v_max3_f32 v{SM}, v{SM}, v{X+8}, v{X+9}
    v_max_f32 v{MX}, v{MX}, v{SM}
    """)
    for x in allred('v_max_f32', MX, TT): a(x)
    a(f'v_mul_f32 v{MX}, s44, v{MX}')
    for i in range(10): a(f'v_fma_f32 v{X+i}, v{X+i}, s44, -v{MX}')
    for i in range(10): a(f'v_exp_f32 v{X+i}, v{X+i}')
    a(f'v_add_f32 v{SM}, v{X}, v{X+1}'); a(f'v_add_f32 v{TT}, v{X+2}, v{X+3}')
    for i in range(4, 10, 2):
        a(f'v_add_f32 v{SM}, v{SM}, v{X+i}'); a(f'v_add_f32 v{TT}, v{TT}, v{X+i+1}')
    a(f'v_add_f32 v{SM}, v{SM}, v{TT}')
    for x in allred('v_add_f32', SM, TT): a(x)
    a(f'v_rcp_f32 v{SM}, v{SM}')
    for i in range(10): a(f'v_mul_f32 v{X+i}, v{X+i}, v{SM}')
    for i in range(5): a(f'v_cvt_pk_bf16_f32 v{AK+i}, v{X+2*i}, v{X+2*i+1}')
    a(f'buffer_store_dwordx4 {vr(AK,4)}, v{A2}, s[{WS}:{WS+3}], s51 offen sc1')
    a(f'buffer_store_dword v{AK+4}, v{A3}, s[{WS}:{WS+3}], s51 offen sc1')
    tick(a, 4); tick_out(a, 7, T)
    a(f's_add_u32 s50, s50, {32*12288}'); a(f's_add_u32 s51, s51, {32*2560}'); a(f's_add_u32 s58, s{S_STEP}, 1')
    next_step('L_c_x_loop', lambda: flag_store(a, VFL, T, 64))
```

```python
from emit import *
MB = 1 << 20
NAME = 'gated_mix__memory_aug_recurrent_mem_tr__ssm_conv_s5__prompt'
WS_BYTES = 256 * MB
QKV_BASE = 64 * MB; QKV_SZ = 24 * MB
VO_BASE = 136 * MB
PX_BASE = 216 * MB
HT_BASE = 222 * MB
BB_BASE = 228 * MB
G_BASE = 234 * MB
FL_BASE = 235 * MB
TS_BASE = 236 * MB
OOB = 0x7ff00000
KA = dict(x=0, mem0=8, Wq=16, Wk=24, Wv=32, Wo=40, lre=64, lim=72, Bre=80, Bim=88, Cre=96, Cim=104, ldt=112, dsk=120, gw=128, out=136, dbg=144, ws=152)
R_C, R_B, R_R, R_S5A, R_S5B, R_SP, R_PJ, R_VO = 0, 32, 64, 104, 114, 124, 128, 224
S_ROLE, S_WAVE, S_H, S_P2, S_SLOT = 2, 3, 4, 5, 6
WS, SA, SB, SC, DBG = 8, 12, 16, 20, 24
SPIN_MAX = 100000
V_TID, V_LANE = 0, 1

def srd(a, dst, slot, nbytes):
    a(f's_load_dwordx2 s[{dst}:{dst+1}], s[0:1], {KA[slot]}')
    a(f's_mov_b32 s{dst+2}, {nbytes}')
    a(f's_mov_b32 s{dst+3}, 0x20000')

def flag_off(role): return FL_BASE + role * 128

def clear_flag(a, vt):
    a(f'''
    v_mov_b32 v{vt}, 0
    v_lshlrev_b32 v{vt+1}, 2, v{V_LANE}
    s_lshl_b32 s30, s{S_ROLE}, 7
    s_add_u32 s30, s30, {FL_BASE}
    s_mov_b64 exec, 0xffffffff
    buffer_store_dword v{vt}, v{vt+1}, s[{WS}:{WS+3}], s30 offen sc1
    s_mov_b64 exec, -1
    ''')
def count_in(a, vt, word=0):
    a(f'''
    s_cmp_eq_u32 s{S_WAVE}, 0
    s_cselect_b32 s30, 0, {OOB}
    v_mov_b32 v{vt}, {word}
    v_mov_b32 v{vt+1}, 1
    s_mov_b64 exec, 1
    buffer_atomic_add v{vt+1}, v{vt}, s[{DBG}:{DBG+3}], s30 offen sc1
    s_mov_b64 exec, -1
    ''')
def arrive0(a, vt, clears=None):
    l = a.lab('ar0')
    a(f's_cmp_lg_u32 s{S_WAVE}, 0'); a(f's_cbranch_scc1 {l}')
    if clears: clears()
    clear_flag(a, vt)
    a.waitf(vm=0)
    count_in(a, vt)
    a.label(l)
def raise_go(a, vt):
    for level, word, n in ((1, 0, 256), (2, 12, 40)):
        l = a.lab('rg')
        a(f'v_mov_b32 v{vt+1}, 0'); a('s_mov_b32 s31, 0')
        a.label(l)
        a(f'''
        buffer_load_dword v{vt}, v{vt+1}, s[{DBG}:{DBG+3}], 0 offen offset:{word} sc1
        s_add_u32 s31, s31, 1
        s_cmp_gt_u32 s31, {SPIN_MAX}
        s_cbranch_scc1 L_abort
        s_sleep 6
        v_readfirstlane_b32 s30, v{vt}
        s_cmp_lt_u32 s30, {n if 'r' in a.enabled or level == 1 else 0}
        s_cbranch_scc1 {l}
        v_mov_b32 v{vt}, {level}
        s_mov_b64 exec, 1
        buffer_store_dword v{vt}, v{vt+1}, s[{DBG}:{DBG+3}], 0 offen offset:192 sc1
        s_mov_b64 exec, -1
        ''')
        a.waitf(vm=0)
def arrive(a, vt):
    clear_flag(a, vt)
    a.waitf(vm=0)
    a('s_barrier')
    count_in(a, vt)

S_PAR = 60; S_STK = 7
def wait_all_arrived(a, vt, level=2):
    l = a.lab('wa')
    a(f'v_mov_b32 v{vt+1}, 0')
    a('s_mov_b32 s31, 0')
    a.label(l)
    a(f'''
    buffer_load_dword v{vt}, v{vt+1}, s[{DBG}:{DBG+3}], 0 offen offset:192 sc1
    s_add_u32 s31, s31, 1
    s_cmp_gt_u32 s31, {SPIN_MAX}
    s_cbranch_scc1 L_abort
    s_sleep 2
    v_readfirstlane_b32 s30, v{vt}
    s_cmp_lt_u32 s30, {level}
    s_cbranch_scc1 {l}
    ''')
    if level == 1: return
    a(f'''
    v_lshlrev_b32 v{vt+1}, 2, v{V_LANE}
    buffer_load_dword v{vt}, v{vt+1}, s[{DBG}:{DBG+3}], 0 offen sc1
    v_readlane_b32 s30, v{vt}, 8
    v_readlane_b32 s31, v{vt}, 9
    v_readlane_b32 s32, v{vt}, 10
    v_readlane_b32 s33, v{vt}, 11
    s_add_u32 s34, s31, s33
    s_add_u32 s35, s30, s32
    s_cmp_lt_u32 s34, s35
    s_cselect_b32 s{S_STK}, 16384, 0
    s_add_u32 s34, s32, s33
    s_add_u32 s35, s30, s31
    s_cmp_lt_u32 s34, s35
    s_cselect_b32 s34, 4096, 0
    s_or_b32 s{S_STK}, s{S_STK}, s34
    v_readlane_b32 s{S_PAR}, v{vt}, 6
    v_readlane_b32 s30, v{vt}, 7
    s_xor_b32 s31, s{S_PAR}, 0xaaaaaaaa
    s_and_b32 s31, s31, s30
    s_bcnt1_i32_b32 s31, s31
    s_lshl_b32 s31, s31, 1
    s_bcnt1_i32_b32 s32, s30
    s_cmp_gt_u32 s31, s32
    s_mov_b32 s31, 0xaaaaaaaa
    s_cselect_b32 s31, 0x55555555, s31
    s_and_b32 s{S_PAR}, s{S_PAR}, s30
    s_andn2_b32 s31, s31, s30
    s_or_b32 s{S_PAR}, s{S_PAR}, s31
    ''')
    if 'stk' in a.opt: a(f's_mov_b32 s{S_STK}, {(int(a.opt["stk"]) & 1) * 16384 + (int(a.opt["stk"]) >> 1) * 4096}')
    if 'par' in a.opt: a(f's_mov_b32 s{S_PAR}, {0x55555555 if int(a.opt["par"]) else 0xaaaaaaaa}')

class WMat:
    def __init__(s, srd, stride, npiece, nks, R, natural, tile_sreg, dest, ntile, pair=False):
        s.pair = pair
        s.srd, s.stride, s.np, s.nks, s.R, s.natural = srd, stride, npiece, nks, R, natural
        s.tile_sreg, s.dest, s.ntile = tile_sreg, dest, ntile
        s.rowb = npiece * 16; s.blk = 8 * s.rowb; s.ni = s.blk // 1024
RING = 163840

def load_weights(a, mats, vt, sbase=None, clears=None, vc=None, last=None, lo=0, hi=RING, pre=0, lo_ts=None, each=None):
    t0 = vt; vt += 4
    for m in mats:
        m.va = vt; vt += m.ni
        m.lb = vt; m.sg = vt + 1; vt += 2
        magic = {24: 2731, 80: 820}[m.np]
        assert all((i * magic) >> 16 == i // m.np for i in range(m.ni * 64))
        sh = 0 if m.rowb % 256 == 0 else 1
        a(f's_lshr_b32 s30, s{S_WAVE}, 1')
        a(f's_and_b32 s31, s{S_WAVE}, 1')
        if m.natural:
            a('s_lshl_b32 s30, s30, 4'); a('s_lshl_b32 s31, s31, 2')
        else:
            a('s_lshl_b32 s30, s30, 3'); a('s_lshl_b32 s31, s31, 4')
        a('s_add_u32 s30, s30, s31')
        a(f's_mov_b32 s32, {m.stride}')
        for j in range(m.ni):
            a(f'''
            v_add_u32 v{t0}, {64*j}, v{V_LANE}
            v_mul_u32_u24 v{t0+1}, {magic}, v{t0}
            v_lshrrev_b32 v{t0+1}, 16, v{t0+1}
            v_mul_u32_u24 v{t0+2}, {m.np}, v{t0+1}
            v_sub_u32 v{t0}, v{t0}, v{t0+2}
            v_lshrrev_b32 v{t0+2}, {sh}, v{t0+1}
            v_lshlrev_b32 v{t0+2}, 1, v{t0+2}
            v_xor_b32 v{t0}, v{t0}, v{t0+2}
            ''')
            if m.natural:
                a(f'''
                v_and_b32 v{t0+2}, 4, v{t0+1}
                v_add_u32 v{t0+1}, v{t0+1}, v{t0+2}
                ''')
            a(f'''
            v_add_u32 v{t0+1}, s30, v{t0+1}
            v_mul_lo_u32 v{t0+1}, v{t0+1}, s32
            v_lshl_add_u32 v{m.va+j}, v{t0}, 4, v{t0+1}
            ''')
        if m.pair:
            a(f'''
            v_lshrrev_b32 v{t0}, 4, v{V_LANE}
            v_bfe_u32 v{t0+1}, v{V_LANE}, 2, 1
            v_lshl_add_u32 v{t0}, v{t0}, 1, v{t0+1}
            v_bfe_u32 v{t0+1}, v{V_LANE}, 3, 1
            v_xor_b32 v{m.sg}, v{t0}, v{t0+1}
            v_mul_u32_u24 v{m.lb}, {m.rowb}, v{t0}
            v_and_b32 v{t0}, 3, v{V_LANE}
            v_lshl_add_u32 v{m.lb}, v{t0}, 3, v{m.lb}
            ''')
            continue
        a(f'''
        v_bfe_u32 v{t0}, v{V_LANE}, 2, 3
        v_lshrrev_b32 v{m.sg}, {sh}, v{t0}
        v_mul_u32_u24 v{m.lb}, {m.rowb}, v{t0}
        v_lshrrev_b32 v{t0}, 5, v{V_LANE}
        v_mul_u32_u24 v{t0}, {2*m.blk}, v{t0}
        v_add_u32 v{m.lb}, v{m.lb}, v{t0}
        v_and_b32 v{t0}, 3, v{V_LANE}
        v_lshl_add_u32 v{m.lb}, v{t0}, 3, v{m.lb}
        ''')
    rounds = []
    for mi, m in enumerate(mats):
        for k0 in range(0, m.nks, m.R): rounds.append((mi, m, k0, min(m.R, m.nks - k0)))
    size = [n * 4 * m.blk for (mi, m, k0, n) in rounds]
    off = []; p = lo
    for z in size:
        if p + z > hi: p = lo
        off.append(p); p += z
    def fits(r, lo):
        return all(off[r] + size[r] <= off[q] or off[q] + size[q] <= off[r] for q in range(lo, r))
    def issue(ri):
        mi, m, k0, n = rounds[ri]
        a(f's_mul_i32 s33, s{S_WAVE}, {m.blk}')
        for kl in range(n):
            so = (k0 + kl) * 32 * m.stride
            if sbase is not None and sbase[mi] is not None: a(f's_add_u32 s34, s{sbase[mi]}, {so}')
            else: a(f's_mov_b32 s34, {so}')
            for j in range(m.ni):
                a(f's_add_u32 m0, s33, {off[ri] + kl * 4 * m.blk + j * 1024}')
                a(f'buffer_load_dwordx4 v{m.va+j}, s[{m.srd}:{m.srd+3}], s34 offen lds')
        return n * m.ni
    seq = []
    nxt = 0
    def fill(lo):
        nonlocal nxt
        while nxt < len(rounds) and fits(nxt, lo) and sum(c for r, c in seq if r is None or r >= lo) + rounds[nxt][3] * rounds[nxt][1].ni <= 60 - (pre if lo == 0 else 0):
            seq.append((nxt, issue(nxt))); nxt += 1
    fill(0)
    for ri, (mi, m, k0, n) in enumerate(rounds):
        at = [k for k, (r, c) in enumerate(seq) if r == ri][0]
        a.waitf(vm=sum(c for r, c in seq[at + 1:]), lg=0)
        a('s_barrier')
        if a.opt.get('lts') and vt < 200 and lo_ts is not None: stamp(a, lo_ts, 16 + ri)
        fill(ri)
        if last and nxt == len(rounds): seq.append((None, last())); last = None
        a(f'v_add_u32 v{t0+2}, {off[ri]}, v{m.lb}')
        for j in range(m.ntile):
            m.tile_sreg(a, j, 35)
            tt = t0 + (j & 1)
            a(f'v_xor_b32 v{tt}, s35, v{m.sg}')
            a(f'v_lshl_add_u32 v{tt}, v{tt}, 5, v{t0+2}')
            for kl in range(n):
                d = m.dest(j, k0 + kl)
                for hf in range(4 if m.pair else 2):
                    a(f'ds_read_b64_tr_b16 {ur(d + 2*hf, 2)}, v{tt} offset:{(4*kl + hf) * m.blk}')
        if each:
            for kl in range(n): each(k0 + kl)
    a.waitf(lg=0)
    a('s_barrier')

def etile_sreg(a, j, sd):
    if j < 2:
        a(f's_lshl_b32 s{sd}, s{S_WAVE}, 1')
        if j: a(f's_add_u32 s{sd}, s{sd}, 1')
    else:
        a(f's_add_u32 s{sd}, s{S_WAVE}, 8')
def dtile_sreg(a, j, sd):
    a(f's_mul_i32 s{sd}, s{S_WAVE}, 10')
    if j: a(f's_add_u32 s{sd}, s{sd}, {j}')

def interleave(a, main, side, start=0, per=1):
    for gi, g in enumerate(main):
        for x in g:
            x() if callable(x) else a(x)
        for x in side.get(gi, []):
            x() if callable(x) else a(x)

def stamp(a, vreg, lane, cyc=False):
    if not a.opt.get('ts'): return
    keep = list(a.lg)
    a('s_memtime s[98:99]' if cyc else 's_memrealtime s[98:99]'); a.waitf(lg=0)
    a.lg = keep
    if isinstance(lane, str):
        a(f's_mov_b32 m0, {lane}'); a(f'v_writelane_b32 v{vreg}, s98, m0')
    else:
        a(f'v_writelane_b32 v{vreg}, s98, {lane}')
def stamp_init(a, vreg, n):
    if not a.opt.get('ts'): return
    for i in range(n): a(f'v_mov_b32 v{vreg+i}, 0')
def stamp_dump(a, vreg, n, vt):
    if not a.opt.get('ts'): return
    a(f'''
    s_lshl_b32 s30, s{S_ROLE}, 12
    s_lshl_b32 s31, s{S_WAVE}, 10
    s_add_u32 s30, s30, s31
    s_add_u32 s30, s30, {TS_BASE}
    v_lshlrev_b32 v{vt}, 2, v{V_LANE}
    ''')
    for i in range(n): a(f'buffer_store_dword v{vreg+i}, v{vt}, s[{WS}:{WS+3}], s30 offen offset:{256*i}')
    a.waitf(vm=0)

def dpair_sreg(a, j, sd):
    a(f's_mul_i32 s{sd}, s{S_WAVE}, 10')
    if j: a(f's_add_u32 s{sd}, s{sd}, {2*j}')

def interleave2(a, main, side):
    seq = []
    for gi, g in enumerate(main): seq += list(g) + list(side.get(gi, []))
    ismf = lambda x: not callable(x) and x.startswith(('v_mfma', 'v_smfmac'))
    isv = lambda x: not callable(x) and x.startswith('v_')
    i = 0
    while i < len(seq):
        a(seq[i]); j = i + 1
        while j < len(seq) and not ismf(seq[j]): j += 1
        gap = seq[i + 1:j]
        for x in gap:
            if not isv(x): x() if callable(x) else a(x)
        vs = [x for x in gap if isv(x)]
        if vs:
            for x in vs: a._waits(Ins(x))
            if j < len(seq): a._waits(Ins(seq[j]))
        for x in vs: a(x)
        i = j

def after_chain_start(a, vt):
    if not int(a.opt.get('defer', 1)): return
    wait_all_arrived(a, vt, 1)
    l = a.lab('acs')
    a(f's_and_b32 s30, s{S_ROLE}, 31'); a('s_lshl_b32 s30, s30, 7'); a(f's_add_u32 s30, s30, {FL_BASE}')
    a(f'v_mov_b32 v{vt+1}, s30'); a('s_mov_b32 s31, 0')
    a.label(l)
    a(f'''
    buffer_load_dword v{vt}, v{vt+1}, s[{WS}:{WS+3}], 0 offen sc1
    s_add_u32 s31, s31, 1
    s_cmp_gt_u32 s31, {SPIN_MAX}
    s_cbranch_scc1 L_abort
    s_sleep 8
    v_readfirstlane_b32 s30, v{vt}
    s_cmp_eq_u32 s30, 0
    s_cbranch_scc1 {l}
    ''')
```

```python
from common import *

XSLOT = 40960
def x_stage_setup(a, vsrc, vrd, perm=False):
    a(f'''
    v_lshrrev_b32 v{vsrc}, 3, v{V_LANE}
    v_and_b32 v{vrd}, 7, v{V_LANE}
    v_xor_b32 v{vrd}, v{vrd}, v{vsrc}
    ''')
    if perm:
        a(f'''
        v_and_b32 v{vrd+1}, 4, v{vsrc}
        v_add_u32 v{vsrc}, v{vsrc}, v{vrd+1}
        s_and_b32 s30, s{S_WAVE}, 1
        s_lshl_b32 s30, s30, 4
        s_lshr_b32 s31, s{S_WAVE}, 1
        s_lshl_b32 s31, s31, 2
        s_add_u32 s30, s30, s31
        ''')
    else:
        a(f's_lshl_b32 s30, s{S_WAVE}, 3')
    a(f'''
    v_add_u32 v{vsrc}, s30, v{vsrc}
    v_mul_u32_u24 v{vsrc}, 1280, v{vsrc}
    v_lshl_add_u32 v{vsrc}, v{vrd}, 4, v{vsrc}
    s_mul_i32 s40, s{S_WAVE}, 10240
    v_and_b32 v{vrd}, 7, v{V_LANE}
    v_lshrrev_b32 v{vrd+1}, 4, v{V_LANE}
    v_xor_b32 v{vrd+1}, v{vrd+1}, v{vrd}
    v_lshlrev_b32 v{vrd+1}, 4, v{vrd+1}
    v_lshl_add_u32 v{vrd}, v{vrd}, 7, v{vrd+1}
    v_bfe_u32 v{vrd+1}, v{V_LANE}, 3, 1
    v_mul_u32_u24 v{vrd+1}, 10240, v{vrd+1}
    v_add_u32 v{vrd}, v{vrd}, v{vrd+1}
    v_xor_b32 v{vrd+1}, 64, v{vrd}
    ''')
def x_off(tt, ks): return tt * 20480 + (ks >> 1) * 1024

def x_dma(a, vsrc, j, s_slot, s_seg):
    return [f's_add_u32 m0, s{s_slot}, {j*1024}', f's_add_u32 s34, s{s_seg}, {j*128}',
            f'buffer_load_dwordx4 v{vsrc}, s[{SA}:{SA+3}], s34 offen lds']

def role_proj(a):
    a.c('===== projection worker: one 192-column head slice of Wq / Wk / Wv stationary in registers =====')
    a(f's_sub_u32 s30, s{S_ROLE}, {R_PJ}')
    a(f's_and_b32 s{S_H}, s30, 31')
    a(f's_lshr_b32 s{S_P2}, s30, 5')
    a(f's_load_dwordx2 s[44:45], s[0:1], {KA["Wq"]}')
    a(f's_load_dwordx2 s[46:47], s[0:1], {KA["Wk"]}')
    a(f's_load_dwordx2 s[48:49], s[0:1], {KA["Wv"]}')
    srd(a, SA, 'x', 2048 * 1280)
    a.waitf(lg=0)
    a(f'''
    s_cmp_eq_u32 s{S_P2}, 1
    s_cselect_b32 s{SB}, s46, s44
    s_cselect_b32 s{SB+1}, s47, s45
    s_cmp_eq_u32 s{S_P2}, 2
    s_cselect_b32 s{SB}, s48, s{SB}
    s_cselect_b32 s{SB+1}, s49, s{SB+1}
    s_mov_b32 s{SB+2}, {640*12288}
    s_mov_b32 s{SB+3}, 0x20000
    s_mul_i32 s41, s{S_H}, 384
    ''')
    stamp_init(a, 250, 2); stamp(a, 251, 0)
    if a.opt.get('ts'): a('v_writelane_b32 v251, s96, 10')
    arrive0(a, 14)
    stamp(a, 251, 1)
    W = lambda j, ks: 256 + (j * 20 + ks) * 4
    VS, VRD, VX, VXN, VST4, VST3, VFL, VFD = 2, 4, 6, 8, 10, 11, 12, 13
    XF, NXF, ACC, PK, PK3 = 16, 8, 48, 72, 76
    x_stage_setup(a, VS, VRD)
    a('s_mov_b32 s53, 0'); a('s_mov_b32 s54, s40')
    for j in range(10): [a(x) for x in x_dma(a, VS, j, 54, 53)]
    def x1():
        a(f's_mov_b32 s53, {XSLOT}'); a(f's_add_u32 s54, s40, {XSLOT}')
        for j in range(10): [a(x) for x in x_dma(a, VS, j, 54, 53)]
        return 10
    def seg0(ks):
        for tt in range(2): a(f'ds_read_b128 {vr(32 + 4*tt, 4)}, v{VRD + (ks & 1)} offset:{x_off(tt, ks)}')
        for tt in range(2):
            for j in range(3):
                c = vr(ACC + 12*tt + 4*j, 4)
                a(f'v_mfma_f32_16x16x32_bf16 {c}, {ur(W(j, ks), 4)}, {vr(32 + 4*tt, 4)}, {c if ks else 0}')
    load_weights(a, [WMat(SB, 12288, 24, 20, 1, True, etile_sreg, W, 3)], 16, sbase=[41], lo=XSLOT, pre=11, lo_ts=251, each=seg0)
    stamp(a, 251, 2); stamp(a, 251, 8, cyc=True)
    a(f'''
    v_add_u32 v{VX}, {XSLOT}, v{VRD}
    v_add_u32 v{VX+1}, {XSLOT}, v{VRD+1}
    v_add_u32 v{VXN}, {2*XSLOT}, v{VRD}
    v_add_u32 v{VXN+1}, {2*XSLOT}, v{VRD+1}
    s_lshl_b32 s30, s{S_WAVE}, 10
    v_lshl_add_u32 v{VST4}, v{V_LANE}, 4, s30
    v_add_u32 v{VST3}, 8192, v{VST4}
    s_lshl_b32 s30, s{S_ROLE}, 7
    s_lshl_b32 s31, s{S_WAVE}, 2
    s_add_u32 s30, s30, s31
    s_add_u32 s30, s30, {FL_BASE}
    v_mov_b32 v{VFL}, s30
    s_mul_i32 s50, s{S_P2}, {QKV_SZ}
    s_mul_i32 s30, s{S_H}, 12288
    s_add_u32 s50, s50, s30
    s_add_u32 s50, s50, {QKV_BASE}
    s_mov_b32 s51, {OOB}
    s_mov_b32 s52, 1                    ; s
    ''')
    def epi(tt, sreg):
        c = ACC + 12*tt
        l = [f'v_cvt_pk_bf16_f32 v{PK+i}, v{c+2*i}, v{c+2*i+1}' for i in range(4)]
        l += [f'v_cvt_pk_bf16_f32 v{PK3+2*tt+i}, v{c+8+2*i}, v{c+8+2*i+1}' for i in range(2)]
        st = [f's_add_u32 s35, s{sreg}, {4096*tt}', f'buffer_store_dwordx4 {vr(PK,4)}, v{VST4}, s[{WS}:{WS+3}], s35 offen sc1']
        if tt: st.append(f'buffer_store_dwordx4 {vr(PK3,4)}, v{VST3}, s[{WS}:{WS+3}], s{sreg} offen sc1')
        return l, st
    for tt in range(2):
        cv, st = epi(tt, 50)
        for x in cv + st: a(x)
    x1()
    a.waitf(vm=10)
    a(f'v_mov_b32 v{VFD}, s52'); a('s_mov_b64 exec, 1')
    a(f'buffer_store_dword v{VFD}, v{VFL}, s[{WS}:{WS+3}], 0 offen sc1'); a('s_mov_b64 exec, -1')
    a(f's_mov_b32 s53, {2*XSLOT}'); a(f's_add_u32 s54, s40, {2*XSLOT}')
    for j in range(10): [a(x) for x in x_dma(a, VS, j, 54, 53)]
    a.waitf(vm=11)
    a('s_barrier')
    a(f's_add_u32 s50, s50, {32*12288}')
    a(f's_mov_b32 s53, {3*XSLOT}'); a('s_mov_b32 s54, s40')
    a('s_mov_b32 s55, 0')
    PF = 6
    def rd(g):
        tt, ks = divmod(g % 40, 20)
        v = (VX if g < 40 else VXN) + (ks & 1)
        return f'ds_read_b128 {vr(XF + 4*(g % NXF), 4)}, v{v} offset:{x_off(tt, ks)}'
    for g in range(PF): a(rd(g))
    a.wait(lg=PF - 1)
    a.label('L_pj_loop')
    if not a.opt.get('nolst'): stamp(a, 250, 's52')
    main = []; side = {}
    for g in range(40):
        tt, ks = divmod(g, 20)
        mf = []
        for j in range(3):
            c = vr(ACC + 12*tt + 4*j, 4)
            mf.append(f'v_mfma_f32_16x16x32_bf16 {c}, {ur(W(j, ks), 4)}, {vr(XF + 4*(g % NXF), 4)}, {c if ks else 0}')
        main.append([mf[0], rd(g + PF), mf[1], lambda: a.wait(lg=PF - 1), mf[2]])
    def put(g, l): side.setdefault(g, []).extend(l)
    put(0, ['s_barrier'])
    cv, st = epi(1, 51)
    put(2, cv[:2]); put(3, cv[2:4]); put(5, cv[4:]); put(6, st[:2]); put(8, st[2:])
    for j in range(10): put(1 + 3*j, [] if a.opt.get('nodma') else x_dma(a, VS, j, 54, 53))
    cv, st = epi(0, 50)
    put(23, cv[:2]); put(24, cv[2:4]); put(26, cv[4:]); put(27, st)
    put(31, [f'v_mov_b32 v{VFD}, s52'])
    put(32, [lambda: a.waitf(vm=8), 's_barrier', 's_mov_b64 exec, 1',
             f'buffer_store_dword v{VFD}, v{VFL}, s[{WS}:{WS+3}], 0 offen sc1', 's_mov_b64 exec, -1'])
    def early():
        l = a.lab('pje')
        a('s_cmp_gt_u32 s52, 2'); a.branch(f's_cbranch_scc1 {l}', nofence=True)
        keep = list(a.hist)
        a.waitf(vm=1)
        a(f'v_mov_b32 v{VFD}, s52'); a('s_mov_b64 exec, 1')
        a(f'buffer_store_dword v{VFD}, v{VFL}, s[{WS}:{WS+3}], 0 offen sc1'); a('s_mov_b64 exec, -1')
        a.hist = []; a.label(l); a.hist = keep
    put(11, [early])
    put(35, [f's_mov_b32 s51, s50', f's_add_u32 s50, s50, {32*12288}'])
    put(36, [f's_add_u32 s53, s53, {XSLOT}', 's_add_u32 s52, s52, 1'])
    put(37, [f'v_mov_b32 v{VX}, v{VXN}', f'v_mov_b32 v{VX+1}, v{VXN+1}'])
    put(38, [f's_add_u32 s56, s55, {XSLOT}', f's_cmp_eq_u32 s56, {3*XSLOT}', 's_cselect_b32 s56, 0, s56', 's_add_u32 s54, s56, s40'])
    (interleave2 if int(a.opt.get('il2', 1)) else interleave)(a, main, side)
    a(f'''
    v_add_u32 v{VXN}, s55, v{VRD}
    v_add_u32 v{VXN+1}, s55, v{VRD+1}
    s_mov_b32 s55, s56
    s_cmp_lt_u32 s52, 64
    ''')
    a.branch('s_cbranch_scc1 L_pj_loop', nofence=True)
    cv, st = epi(1, 51)
    for x in cv + st: a(x)
    a.waitf(vm=0, lg=0)
    stamp(a, 251, 3); stamp(a, 251, 9, cyc=True); stamp_dump(a, 250, 2, 14)
    a(f'''
    v_mov_b32 v{VFD}, s52
    s_mov_b64 exec, 1
    buffer_store_dword v{VFD}, v{VFL}, s[{WS}:{WS+3}], 0 offen sc1
    s_mov_b64 exec, -1
    s_barrier
    s_branch L_xc
    ''')

def role_vo(a):
    a.c('===== VO worker: Wo[h] stationary, VO = V[h] Wo[h] per segment =====')
    a(f's_sub_u32 s{S_H}, s{S_ROLE}, {R_VO}')
    srd(a, SB, 'Wo', 32 * 245760)
    a.waitf(lg=0)
    a(f's_mul_i32 s41, s{S_H}, 245760')
    stamp_init(a, 250, 3); stamp(a, 251, 0)
    arrive0(a, 4)
    stamp(a, 251, 1)
    W = lambda j, ks: 256 + (j * 6 + ks) * 4
    load_weights(a, [WMat(SB, 1280, 80, 6, 1, False, dtile_sreg, W, 10)], 8, sbase=[41], lo_ts=251)
    stamp(a, 251, 2)
    wait_all_arrived(a, 8, 1)
    stamp(a, 251, 4)
    VL, VL2, VL3, VST, VFL, VFD, VZ = 2, 3, 4, 5, 6, 7, 8
    FLG, ACC, PK, VB = 12, 16, 32, 48
    a(f'''
    v_lshlrev_b32 v{VL}, 4, v{V_LANE}
    v_add_u32 v{VL2}, 4096, v{VL}
    v_add_u32 v{VL3}, 8192, v{VL}
    s_mul_i32 s30, s{S_WAVE}, {10*32768}
    s_lshl_b32 s31, s{S_H}, 10
    s_add_u32 s30, s30, s31
    v_add_u32 v{VST}, s30, v{VL}
    s_lshl_b32 s30, s{S_ROLE}, 7
    s_lshl_b32 s31, s{S_WAVE}, 2
    s_add_u32 s30, s30, s31
    s_add_u32 s30, s30, {FL_BASE}
    v_mov_b32 v{VFL}, s30
    v_mov_b32 v{VZ}, 0
    s_lshl_b32 s56, s{S_H}, 7
    s_add_u32 s56, s56, {flag_off(R_PJ + 64)}
    s_mul_i32 s50, s{S_H}, 12288
    s_add_u32 s50, s50, {QKV_BASE + 2*QKV_SZ}
    s_mov_b32 s51, {VO_BASE}
    s_mov_b32 s52, 0                              ; s
    s_mov_b32 s57, 0
    ''')
    fl = f'buffer_load_dwordx4 {vr(FLG,4)}, v{VZ}, s[{WS}:{WS+3}], s56 offen sc1'
    chk = f'''
    v_min_u32 v{FLG}, v{FLG}, v{FLG+1}
    v_min3_u32 v{FLG}, v{FLG}, v{FLG+2}, v{FLG+3}
    v_readfirstlane_b32 s57, v{FLG}
    '''
    def loads(buf, sreg):
        l = []
        for f in range(12):
            l.append(f'buffer_load_dwordx4 {vr(VB + 48*buf + 4*f, 4)}, v{(VL, VL2, VL3)[f // 4]}, s[{WS}:{WS+3}], s{sreg} offen offset:{(f % 4) * 1024} sc1')
        return l
    def fetch_now(buf):
        lp = a.lab('vpl')
        a('s_mov_b32 s31, 0')
        a.vm = []; a.label(lp)
        a(f'''
        {fl}
        s_add_u32 s31, s31, 1
        s_cmp_gt_u32 s31, {SPIN_MAX}
        s_cbranch_scc1 L_abort
        {chk}
        s_cmp_le_u32 s57, s52
        s_cbranch_scc1 {lp}
        s_sub_u32 s59, s50, {32*12288}
        ''')
        for x in loads(buf, 59): a(x)
        a.settle(3)
    a(f's_add_u32 s50, s50, {32*12288}')
    fetch_now(0)
    a.label('L_vo_loop')
    for buf in range(2):
        stamp(a, 250, 's52')
        sel = (chk + f'''
        s_add_u32 s30, s52, 1
        s_cmp_le_u32 s57, s30
        s_cselect_b32 s58, 1, 0
        s_cselect_b32 s59, {OOB}, s50
        s_cmp_ge_u32 s30, 64
        s_cselect_b32 s58, 0, s58
        ''')
        ld = loads(1 - buf, 59)
        for k in range(2):
            for i in range(2): a(f'v_swap_b32 v{VB+48*buf+32+8*k+2+i}, v{VB+48*buf+32+8*k+4+i}')
        main = []; side = {}
        for dt in range(10):
            for ks in range(6):
                grp = []
                for tt in range(2):
                    c = vr(ACC + 8*(dt & 1) + 4*tt, 4)
                    grp.append(f'v_mfma_f32_16x16x32_bf16 {c}, {vr(VB + 48*buf + (16*tt + 4*ks if ks < 4 else 32 + 8*(ks-4) + 4*tt), 4)}, {ur(W(dt, ks), 4)}, {c if ks else 0}')
                main.append(grp)
        def epi(dt):
            c = ACC + 8*(dt & 1); p = PK + 4*(dt & 1)
            return ([f'v_cvt_pk_bf16_f32 v{p+i}, v{c+2*i}, v{c+2*i+1}' for i in range(4)],
                    [f's_add_u32 s34, s51, {dt*32768}', f'buffer_store_dwordx4 {vr(p,4)}, v{VST}, s[{WS}:{WS+3}], s34 offen sc1'])
        for dt in range(9):
            cv, st = epi(dt)
            side.setdefault(6*dt + 9, []).extend(cv[:2]); side.setdefault(6*dt + 10, []).extend(cv[2:]); side.setdefault(6*dt + 11, []).extend(st)
        side.setdefault(12, []).append(fl); side.setdefault(25, []).append(sel)
        for f in range(12): side.setdefault(26 + 2*f, []).append(ld[f])
        def flag():
            n = 3
            a.waitf(vm=n)
            a(f'v_mov_b32 v{VFD}, s52'); a('s_mov_b64 exec, 1')
            a(f'buffer_store_dword v{VFD}, v{VFL}, s[{WS}:{WS+3}], 0 offen sc1'); a('s_mov_b64 exec, -1')
        side.setdefault(20, []).append(flag)
        interleave(a, main, side)
        cv, st = epi(9)
        for x in cv + st: a(x)
        a(f'''
        s_add_u32 s50, s50, {32*12288}
        s_add_u32 s51, s51, {40*32768}
        s_add_u32 s52, s52, 1
        s_cmp_eq_u32 s58, 0
        ''')
        nf = a.lab('vnf'); pf = a.lab('vpf')
        a(f's_cbranch_scc0 {pf}')
        a(f's_cmp_gt_u32 s52, {int(a.opt.get("vpf", 0))}')
        a(f's_cbranch_scc1 {nf}')
        a.label(pf)
        keep = list(a.vm)
        a.waitf(vm=0)
        a(f'v_mov_b32 v{VFD}, s52'); a('s_mov_b64 exec, 1')
        a(f'buffer_store_dword v{VFD}, v{VFL}, s[{WS}:{WS+3}], 0 offen sc1'); a('s_mov_b64 exec, -1')
        a('s_cmp_eq_u32 s58, 0')
        a(f's_cbranch_scc1 {nf}')
        fetch_now(1 - buf)
        a.label(nf)
    a('s_cmp_lt_u32 s52, 64')
    a('s_cbranch_scc1 L_vo_loop')
    a.waitf(vm=0)
    stamp(a, 251, 3); stamp_dump(a, 250, 3, 10)
    a(f'''
    v_mov_b32 v{VFD}, s52
    s_mov_b64 exec, 1
    buffer_store_dword v{VFD}, v{VFL}, s[{WS}:{WS+3}], 0 offen sc1
    s_mov_b64 exec, -1
    s_barrier
    s_branch L_xc
    ''')
```

```python
from common import *
from chain import step_base, S_BASE, s_page

def role_xc(a):
    a.c('===== XC: segment rows out = gate-mix(P [Z; VO], S5) for 128 columns; tasks taken from a counter =====')
    OUT, XS, DS = SA, SB, SC
    def xt(i):
        if a.opt.get('ts'): a.raw(f'    s_memrealtime s[{80+2*i}:{81+2*i}]')
    if int(a.opt.get('farxc', 1)):
        a(f's_sub_u32 s30, s{S_SLOT}, 138'); a(f's_cmp_ge_u32 s30, {int(a.opt.get("nxc", 56))}'); a('s_cbranch_scc1 L_end')
    srd(a, OUT, 'out', 2048 * 640 * 4); srd(a, XS, 'x', 2048 * 1280); srd(a, DS, 'dsk', 1280)
    a.waitf(vm=0, lg=0)
    NT = int(a.opt.get('nt', 4)); NG = 40 // NT; NK = NT // 2; LG = NT.bit_length() - 1
    VL, VPM, VF1, VF2, VW, VR_, VE, T = 2, 3, 4, 5, 6, 7, 8, 12
    ACC, PX, PM, ZF, EP = 24, 88, 152, 168, 232
    wait_all_arrived(a, T)
    a(f"""
    v_lshlrev_b32 v{VL}, 4, v{V_LANE}
    v_and_b32 v{T}, 15, v{V_LANE}
    v_lshrrev_b32 v{T+1}, 4, v{V_LANE}
    v_mul_u32_u24 v{VPM}, 2560, v{T+1}
    v_lshl_add_u32 v{VPM}, v{T}, 4, v{VPM}
    s_lshl_b32 s30, s{S_WAVE}, {11+LG}
    v_add_u32 v{VW}, s30, v{VL}
    s_lshl_b32 s30, s{S_WAVE}, {9+LG}
    v_add_u32 v{VR_}, s30, v{VL}
    s_lshl_b32 s30, s{S_WAVE}, 10
    s_add_u32 s30, s30, {flag_off(R_VO)}
    v_and_b32 v{T+2}, 7, v{V_LANE}
    v_lshl_add_u32 v{VF1}, v{T+2}, 7, s30
    s_mov_b32 s44, 0xffff0000
    """)
    a.label('L_xc_loop')
    sk = a.lab('xk')
    a(f'v_mov_b32 v{T}, {65536}')
    a(f's_cmp_lg_u32 s{S_WAVE}, 0'); a(f's_cbranch_scc1 {sk}')
    a(f"""
    v_mov_b32 v{T+1}, 16
    v_mov_b32 v{T+2}, 1
    s_mov_b64 exec, 1
    buffer_atomic_add v{T+2}, v{T+1}, s[{DBG}:{DBG+3}], 0 offen sc0 sc1
    ds_write_b32 v{T}, v{T+2}
    s_mov_b64 exec, -1
    """)
    a.waitf(lg=0)
    a.label(sk)
    a('s_barrier')
    a(f'ds_read_b32 v{T+1}, v{T}')
    a(f'v_readfirstlane_b32 s50, v{T+1}')
    MG = (1 << 20) // NG + 1
    a(f's_cmp_ge_u32 s50, {64*NG}'); a('s_cbranch_scc1 L_end')
    a(f"""
    s_mul_i32 s52, s50, {MG}
    s_lshr_b32 s52, s52, 20                 ; segment
    s_mul_i32 s30, s52, {NG}
    s_sub_u32 s53, s50, s30
    """)
    assert all((t * MG) >> 20 == t // NG for t in range(64 * NG))
    def wait_flags(vaddr):
        lp = a.lab('xp'); ok = a.lab('xo')
        a('s_mov_b32 s31, 0')
        keep = list(a.vm)
        a.label(lp)
        a(f"""
        buffer_load_dwordx4 {vr(T,4)}, v{vaddr}, s[{WS}:{WS+3}], 0 offen sc1
        s_add_u32 s31, s31, 1
        s_cmp_gt_u32 s31, {SPIN_MAX}
        s_cbranch_scc1 L_abort
        v_min_u32 v{T}, v{T}, v{T+1}
        v_min3_u32 v{T}, v{T}, v{T+2}, v{T+3}
        v_cmp_ge_u32 vcc, s52, v{T}
        s_cbranch_vccz {ok}
        s_sleep 4
        s_branch {lp}
        """)
        a.label(ok, fresh=True)
    xt(0)
    wait_flags(VF1)
    a(f"""
    s_mul_i32 s54, s52, {40*32768}
    s_lshl_b32 s30, s53, {15+LG}
    s_add_u32 s54, s54, s30
    s_lshl_b32 s30, s{S_WAVE}, 13
    s_add_u32 s54, s54, s30
    s_add_u32 s54, s54, {VO_BASE}
    """)
    VOR = lambda hh, dt: 256 + (dt * 8 + hh) * 4
    for dt in range(NT):
        for q in range(2):
            a(f's_add_u32 s34, s54, {dt*32768 + q*4096}')
            for k in range(4): a(f'buffer_load_dwordx4 {ur(VOR(4*q+k, dt), 4)}, v{VL}, s[{WS}:{WS+3}], s34 offen offset:{k*1024} sc1')
    a(f"""
    s_lshl_b32 s30, s{S_WAVE}, 3
    v_and_b32 v{T}, 7, v{V_LANE}
    v_add_u32 v{T}, s30, v{T}
    v_and_b32 v{T+1}, 8, v{V_LANE}
    v_lshl_add_u32 v{T}, v{T+1}, 2, v{T}
    s_lshl_b32 s30, s53, {LG}
    s_lshr_b32 s30, s30, 2
    s_add_u32 s30, s30, {R_S5B - 16}
    v_add_u32 v{T+1}, s30, v{V_LANE}
    v_cmp_gt_u32 vcc, 16, v{V_LANE}
    v_cndmask_b32 v{T}, v{T+1}, v{T}, vcc
    s_lshr_b32 s30, s52, 4
    s_add_u32 s30, s30, {R_SP}
    v_mov_b32 v{T+1}, s30
    v_cmp_gt_u32 vcc, {16 + max(1, NT // 4)}, v{V_LANE}
    v_cndmask_b32 v{T}, v{T+1}, v{T}, vcc
    s_cmp_lt_u32 s52, 62
    s_cselect_b32 s30, 16, 0
    v_cmp_le_u32 vcc, s30, v{V_LANE}
    v_cndmask_b32 v{T}, v{T+1}, v{T}, vcc
    v_lshlrev_b32 v{VF2}, 7, v{T}
    v_add_u32 v{VF2}, {FL_BASE}, v{VF2}
    """)
    a(f"""
    s_lshr_b32 s30, s{S_WAVE}, 1
    s_lshl_b32 s31, s52, 1
    s_add_u32 s31, s31, s30
    s_lshl_b32 s32, s53, {LG}
    s_and_b32 s33, s{S_WAVE}, 1
    s_lshl_b32 s33, s33, {LG-1}
    s_add_u32 s32, s32, s33
    s_mul_i32 s55, s31, 40
    s_add_u32 s55, s55, s32
    s_lshl_b32 s55, s55, 10
    s_add_u32 s55, s55, {BB_BASE}
    s_lshl_b32 s31, s31, 4
    v_and_b32 v{T}, 15, v{V_LANE}
    v_add_u32 v{T}, s31, v{T}               ; token
    v_lshrrev_b32 v{T+1}, 4, v{V_LANE}
    s_lshl_b32 s32, s32, 5
    v_lshl_add_u32 v{VE}, v{T+1}, 3, s32
    v_mul_u32_u24 v{VE+1}, 1280, v{T}
    v_add_u32 v{VE+1}, v{VE+1}, v{VE}       ; x offset
    v_lshlrev_b32 v{VE+2}, 1, v{VE+1}
    v_lshlrev_b32 v{VE+3}, 3, v{T}
    v_add_u32 v{VE+3}, {G_BASE}, v{VE+3}
    """)
    XR, DR, GR = EP, EP + 8, EP + 16
    for k in range(NK):
        a(f'buffer_load_dwordx2 {vr(XR + 2*k, 2)}, v{VE+1}, s[{XS}:{XS+3}], 0 offen offset:{k*32}')
        a(f'buffer_load_dwordx2 {vr(DR + 2*k, 2)}, v{VE}, s[{DS}:{DS+3}], 0 offen offset:{k*32}')
    if int(a.opt.get('coarse', 1)):
        lp = a.lab('xcw'); ok = a.lab('xcok')
        a('s_mov_b32 s31, 0'); a(f'v_mov_b32 v{T+1}, {flag_off(R_B)}')
        a('s_add_u32 s33, s52, 2'); a('s_cmp_lt_u32 s52, 62'); a('s_cselect_b32 s33, s33, 62')
        a.label(lp)
        a(f"""
        buffer_load_dword v{T}, v{T+1}, s[{WS}:{WS+3}], 0 offen sc1
        s_add_u32 s31, s31, 1
        s_cmp_gt_u32 s31, {SPIN_MAX}
        s_cbranch_scc1 L_abort
        v_readfirstlane_b32 s30, v{T}
        s_cmp_ge_u32 s30, s33
        s_cbranch_scc1 {ok}
        s_sleep {a.opt.get('csl', 24)}
        s_branch {lp}
        """)
        a.label(ok, fresh=True)
    wait_flags(VF2)
    xt(1)
    step_base(a, S_BASE, 52)
    a(f"""
    s_mul_i32 s56, s52, {32*2560}
    s_mul_i32 s30, s{S_WAVE}, {8*2560}
    s_add_u32 s56, s56, s30
    s_add_u32 s56, s56, {PX_BASE}
    s_and_b32 s30, s{S_WAVE}, 1
    s_lshl_b32 s30, s30, 11
    s_add_u32 s57, s{S_BASE}, s30
    """)
    for hh in range(8):
        a(f's_add_u32 s34, s56, {hh*2560}')
        for it in range(2): a(f'buffer_load_dwordx4 {vr(PX + 8*hh + 4*it, 4)}, v{VL}, s[{WS}:{WS+3}], s34 offen offset:{it*1024} sc1')
    for u in range(2):
        a(f's_add_u32 s34, s56, {u*4*2560}')
        for it in range(2): a(f'buffer_load_dwordx4 {vr(PM + 8*u + 4*it, 4)}, v{VPM}, s[{WS}:{WS+3}], s34 offen offset:{2048 + it*256} sc1')
    for dt in range(NT):
        a(f's_lshl_b32 s32, s53, {LG}'); a(f's_add_u32 s32, s32, {dt}')
        a('s_lshr_b32 s30, s32, 2'); a('s_lshl_b32 s30, s30, 1'); a(f's_lshr_b32 s31, s{S_WAVE}, 1'); a('s_add_u32 s30, s30, s31'); a('s_add_u32 s30, s30, 3')
        s_page(a, 34, 32, 30, 31); a(f's_xor_b32 s34, s34, s{S_STK}'); a('s_add_u32 s34, s34, s57')
        for u in range(2): a(f'buffer_load_dwordx4 {vr(ZF + 8*dt + 4*u, 4)}, v{VL}, s[{WS}:{WS+3}], s34 offen offset:{u*1024} sc1')
    a(f'buffer_load_dwordx2 {vr(GR,2)}, v{VE+3}, s[{WS}:{WS+3}], 0 offen sc1')
    YR = PX if NT == 8 else ZF + 32
    yl = [f'buffer_load_dwordx4 {vr(YR + 4*k, 4)}, v{VL}, s[{WS}:{WS+3}], s55 offen offset:{k*1024} sc1' for k in range(NK)]
    if NT < 8:
        for x in yl: a(x)
    for hh in range(8):
        for it in range(2):
            for dt in range(NT):
                c = vr(ACC + 4*NT*it + 4*dt, 4)
                a(f'v_mfma_f32_16x16x32_bf16 {c}, {ur(VOR(hh, dt), 4)}, {vr(PX + 8*hh + 4*it, 4)}, {c if hh else 0}')
    xt(2)
    if NT == 8:
        for x in yl: a(x)
    for dt in range(NT):
        for u in range(2):
            for it in range(2):
                c = vr(ACC + 4*NT*it + 4*dt, 4)
                a(f'v_mfma_f32_16x16x32_bf16 {c}, {vr(ZF + 8*dt + 4*u, 4)}, {vr(PM + 8*u + 4*it, 4)}, {c}')
    xt(3)
    for t in range(2*NT): a(f'ds_write_b128 v{VW}, {vr(ACC + 4*t, 4)} offset:{t*1024}')
    a.waitf(lg=0); a('s_barrier')
    for k in range(NK):
        for w in range(4): a(f'ds_read_b128 {vr(ACC + 16*k + 4*w, 4)}, v{VR_} offset:{w*2048*NT + k*1024}')
    for k in range(NK):
        b = ACC + 16*k; y = YR + 4*k
        for i in range(4): a(f'v_add_f32 v{b+i}, v{b+i}, v{b+4+i}')
        for i in range(4): a(f'v_add_f32 v{b+8+i}, v{b+8+i}, v{b+12+i}')
        for i in range(4): a(f'v_add_f32 v{b+i}, v{b+i}, v{b+8+i}')
        def rnd(x0, x1, t):
            a(f'v_cvt_pk_bf16_f32 v{t}, v{x0}, v{x1}'); a(f'v_lshlrev_b32 v{x0}, 16, v{t}'); a(f'v_and_b32 v{x1}, s44, v{t}')
        for p in range(2):
            x0, x1, s0, s1, t = b + 2*p, b + 2*p + 1, b + 4, b + 5, b + 8
            rnd(x0, x1, t)
            a(f'v_mul_f32 v{x0}, v{x0}, v{GR}'); a(f'v_mul_f32 v{x1}, v{x1}, v{GR}')
            rnd(x0, x1, t)
            a(f"""
            v_lshlrev_b32 v{s0}, 16, v{XR+2*k+p}
            v_and_b32 v{s1}, s44, v{XR+2*k+p}
            v_lshlrev_b32 v{s0+2}, 16, v{DR+2*k+p}
            v_and_b32 v{s1+2}, s44, v{DR+2*k+p}
            v_mul_f32 v{s0}, v{s0}, v{s0+2}
            v_mul_f32 v{s1}, v{s1}, v{s1+2}
            """)
            rnd(s0, s1, t)
            a(f"""
            v_add_f32 v{s0}, v{s0}, v{y+2*p}
            v_add_f32 v{s1}, v{s1}, v{y+2*p+1}
            v_mul_f32 v{s0}, v{s0}, v{GR+1}
            v_mul_f32 v{s1}, v{s1}, v{GR+1}
            v_add_f32 v{x0}, v{x0}, v{s0}
            v_add_f32 v{x1}, v{x1}, v{s1}
            """)
        a(f'buffer_store_dwordx4 {vr(b,4)}, v{VE+2}, s[{OUT}:{OUT+3}], 0 offen offset:{k*64} {a.opt.get("opol", "")}')
    if a.opt.get('ts'):
        a.waitf(vm=0); xt(4); a.waitf(lg=0)
        for i in range(5): a(f'v_writelane_b32 v{T}, s{80+2*i}, {i}')
        a(f'v_writelane_b32 v{T}, s{S_SLOT}, 5')
        a(f's_lshl_b32 s30, s50, 5'); a(f's_add_u32 s30, s30, {TS_BASE + 6*MB}')
        a(f's_cmp_eq_u32 s{S_WAVE}, 0'); a(f's_cselect_b32 s30, s30, {OOB}')
        a(f'v_lshlrev_b32 v{T+1}, 2, v{V_LANE}'); a('s_mov_b64 exec, 0xff')
        a(f'buffer_store_dword v{T}, v{T+1}, s[{WS}:{WS+3}], s30 offen'); a('s_mov_b64 exec, -1')
    a('s_branch L_xc_loop')
```

```python
import sys, importlib
from common import *
import workers
def build(enabled=('pj', 'vo', 'c', 'b', 'r', 's5a', 's5b', 'xc'), **opt):
    a = Asm(); a.opt = opt; a.enabled = enabled
    a(f'''
    s_cmp_ge_u32 s2, 256
    s_cbranch_scc1 L_end
    s_load_dwordx2 s[{WS}:{WS+1}], s[0:1], {KA["ws"]}
    s_load_dwordx2 s[{DBG}:{DBG+1}], s[0:1], {KA["dbg"]}
    s_mov_b32 s{WS+2}, {WS_BYTES}
    s_mov_b32 s{WS+3}, 0x20000
    s_mov_b32 s{DBG+2}, 256
    s_mov_b32 s{DBG+3}, 0x20000
    v_and_b32 v{V_LANE}, 63, v0
    v_lshrrev_b32 v2, 6, v0
    v_readfirstlane_b32 s{S_WAVE}, v2
    ''')
    if opt.get('ts'): a('s_memrealtime s[96:97]')
    a(f'''
    s_getreg_b32 s40, hwreg(HW_REG_XCC_ID)
    s_and_b32 s40, s40, 7
    v_mov_b32 v4, 0
    s_cmp_lg_u32 s{S_WAVE}, 0
    ''')
    a.waitf(lg=0)
    a('s_cbranch_scc1 L_tk')
    a(f'''
    s_lshl_b32 s30, s40, 4
    s_add_u32 s30, s30, 64
    v_mov_b32 v2, s30
    v_mov_b32 v3, 1
    s_mov_b64 exec, 1
    buffer_atomic_add v3, v2, s[{DBG}:{DBG+3}], 0 offen sc0 sc1
    s_mov_b64 exec, -1
    v_readfirstlane_b32 s41, v3
    s_cmp_lt_u32 s41, 32
    s_cbranch_scc1 L_tk_ok
    v_mov_b32 v2, 20
    v_mov_b32 v3, 1
    s_mov_b64 exec, 1
    buffer_atomic_add v3, v2, s[{DBG}:{DBG+3}], 0 offen sc0 sc1
    s_mov_b64 exec, -1
    v_readfirstlane_b32 s42, v3
    v_and_b32 v2, 7, v{V_LANE}
    v_lshlrev_b32 v2, 4, v2
    s_mov_b32 s31, 0
    ''')
    a.label('L_tk_all')
    a(f'''
    buffer_load_dword v3, v2, s[{DBG}:{DBG+3}], 0 offen offset:64 sc1
    s_add_u32 s31, s31, 1
    s_cmp_gt_u32 s31, {SPIN_MAX}
    s_cbranch_scc1 L_tk_bad
    v_mov_b32 v5, v3
    v_add_u32_dpp v5, v5, v5 row_ror:4 row_mask:0xf bank_mask:0xf
    v_add_u32_dpp v5, v5, v5 row_ror:2 row_mask:0xf bank_mask:0xf
    v_add_u32_dpp v5, v5, v5 row_ror:1 row_mask:0xf bank_mask:0xf
    v_readfirstlane_b32 s30, v5
    s_cmp_lt_u32 s30, 256
    s_cbranch_scc1 L_tk_all
    s_mov_b32 s40, 0
    ''')
    a.label('L_tk_hole')
    a('''
    v_readlane_b32 s41, v3, s40
    s_min_u32 s41, s41, 32
    s_add_u32 s41, s41, s42
    s_cmp_lt_u32 s41, 32
    s_cbranch_scc1 L_tk_ok
    s_sub_u32 s42, s41, 32
    s_add_u32 s40, s40, 1
    s_cmp_lt_u32 s40, 8
    s_cbranch_scc1 L_tk_hole
    ''')
    a.label('L_tk_bad')
    a.waitf(vm=0)
    a('s_mov_b32 s41, 64')
    a.label('L_tk_ok')
    a(f'''
    s_lshl_b32 s41, s41, 2
    s_and_b32 s30, s40, 3
    s_add_u32 s41, s41, s30
    s_and_b32 s30, s40, 4
    s_lshl_b32 s30, s30, 5
    s_add_u32 s41, s41, s30
    v_mov_b32 v3, s41
    ds_write_b32 v4, v3
    ''')
    a.waitf(lg=0)
    a.label('L_tk')
    a(f'''
    s_barrier
    ds_read_b32 v3, v4
    v_readfirstlane_b32 s30, v3
    s_barrier
    s_cmp_gt_u32 s30, 255
    s_cbranch_scc1 L_end
    s_mov_b32 s{S_ROLE}, s30
    s_mov_b32 s{S_SLOT}, s{S_ROLE}
    s_sub_u32 s30, s{S_ROLE}, {R_S5B}
    s_cmp_lt_u32 s30, 10
    s_cselect_b32 s31, {R_PJ - R_S5B}, 0
    s_sub_u32 s30, s{S_ROLE}, {R_PJ}
    s_cmp_lt_u32 s30, 10
    s_cselect_b32 s31, {R_S5B - R_PJ}, s31
    s_add_u32 s{S_ROLE}, s{S_ROLE}, s31
    ''')
    a.waitf(lg=0)
    table = [('c', R_B), ('b', R_R), ('r', R_S5A), ('s5a', R_S5B), ('s5b', R_SP), ('sp', R_PJ), ('pj', R_VO), ('vo', 256)]
    for nm, hi in table[:-1]:
        a(f's_cmp_lt_u32 s{S_ROLE}, {hi}')
        a(f's_cbranch_scc1 L_role_{nm if nm in enabled else "sp"}')
    a(f's_branch L_role_{"vo" if "vo" in enabled else "sp"}')
    mods = {'pj': workers.role_proj, 'vo': workers.role_vo}
    try:
        import chain; mods.update({'c': chain.role_c, 'b': chain.role_b, 'r': chain.role_r})
    except ImportError: pass
    try:
        import s5; mods.update({'s5a': s5.role_s5a, 's5b': s5.role_s5b})
    except ImportError: pass
    for nm in ('c', 'b', 'r', 's5a', 's5b', 'pj', 'vo'):
        if nm in enabled:
            a.raw('.p2align 6')
            a.label(f'L_role_{nm}', fresh=True); mods[nm](a)
    a.label('L_role_sp', fresh=True)
    arrive(a, 8)
    a(f's_lshl_b32 s30, s{S_ROLE}, 2'); a(f's_add_u32 s30, s30, s{S_WAVE}'); a(f's_cmp_lg_u32 s30, {4*R_SP}'); a('s_cbranch_scc1 L_nogo')
    raise_go(a, 8)
    a.label('L_nogo')
    a(f's_cmp_lt_u32 s{S_ROLE}, {R_S5A}')
    a('s_cbranch_scc1 L_end')
    if 'xc' in enabled or 'g' in enabled:
        a(f's_cmp_lt_u32 s{S_ROLE}, {R_SP}'); a('s_cbranch_scc1 L_xc')
        a(f's_cmp_ge_u32 s{S_ROLE}, {R_PJ}'); a('s_cbranch_scc1 L_xc')
        s5.role_gate(a)
    a.label('L_xc')
    if 'xc' in enabled:
        import xc; xc.role_xc(a)
    a('s_branch L_end')
    a.saved.setdefault('L_abort', a.state())
    a.label('L_abort', fresh=True)
    a.waitf(vm=0, lg=0)
    a(f'''
    v_mov_b32 v2, 4
    v_mov_b32 v3, 1
    s_mov_b64 exec, 1
    buffer_atomic_add v3, v2, s[{DBG}:{DBG+3}], 0 offen sc1
    v_mov_b32 v2, 8
    v_mov_b32 v3, s{S_ROLE}
    buffer_store_dword v3, v2, s[{DBG}:{DBG+3}], 0 offen sc1
    ''')
    a.saved['L_end'] = ([], [], False); a.vm = []; a.lg = []; a.smem = False
    a.label('L_end')
    a('s_endpgm')
    ref = open(f'cdna_kernels/{NAME}.s.ref').read().split('\n')
    head = [l for l in ref if l.startswith(';') and '@launch' not in l and 'Override' not in l and 'grid=ceil' not in l]
    txt = '\n'.join(head) + f'''
; @launch grid=(256,1,1) block=(256,1,1) lds=163840
.amdgcn_target "amdgcn-amd-amdhsa--gfx950"
.text
.globl {NAME}_kernel
.p2align 8
.type {NAME}_kernel,@function
{NAME}_kernel:
''' + a.text() + f'''.section .rodata,"a"
.p2align 6
.amdhsa_kernel {NAME}_kernel
  .amdhsa_next_free_vgpr 512
  .amdhsa_next_free_sgpr 102
  .amdhsa_accum_offset 256
  .amdhsa_group_segment_fixed_size 0
  .amdhsa_kernarg_size 160
  .amdhsa_user_sgpr_count 2
  .amdhsa_user_sgpr_kernarg_segment_ptr 1
  .amdhsa_system_sgpr_workgroup_id_x 1
  .amdhsa_float_denorm_mode_32 3
.end_amdhsa_kernel
'''
    return txt
if __name__ == '__main__':
    en = sys.argv[2].split(',') if len(sys.argv) > 2 else ('pj', 'vo', 'c', 'b', 'r', 's5a', 's5b', 'xc')
    opt = dict(kv.split('=') for kv in sys.argv[3:])
    open(sys.argv[1], 'w').write(build(en, **opt))
```
